```python
import torch

def _softmax(x, axis=-1):
    return torch.softmax(x, dim=axis)

def _gelu(x):
    return torch.nn.functional.gelu(x, approximate='tanh')

def _silu(x):
    return torch.nn.functional.silu(x)

def _sigmoid(x):
    return torch.sigmoid(x)

def _layernorm(x, axis=-1, eps=1e-05):
    m = x.mean(dim=axis, keepdim=True)
    v = x.var(dim=axis, keepdim=True, unbiased=False)
    return (x - m) / torch.sqrt(v + eps)

def _scatter_add(tgt, idx, src, axis=0):
    return tgt.clone().index_add_(axis, idx, src)

def _segment_sum(src, seg, n):
    out = torch.zeros((n,) + src.shape[1:], dtype=src.dtype)
    return out.index_add_(0, seg, src)

def _pad(x, pw):
    flat = tuple((v for pair in reversed(pw) for v in pair))
    return torch.nn.functional.pad(x, flat)
kernel_name = 'standalone__factorization_afm__recsys'

def setup_inputs():

    _w = lambda a: (lambda t: t.to(torch.bfloat16) if t.is_floating_point() else t)(torch.as_tensor(a))
    B, F, D, V = (16384, 26, 32, min(1000000, 100000))
    A = D
    ii, jj = tuple(torch.triu_indices(F, F, 1).unbind(0))
    return {'idx': _w((lambda lo, hi, *s: torch.randint(lo, hi, s))(0, V, B, F).to(torch.int64)), 'table': _w((lambda *s: torch.randn(*s, dtype=torch.bfloat16) * 0.8)(V, D)), 'ii': _w(ii.to(torch.int64)), 'jj': _w(jj.to(torch.int64)), 'W': _w((lambda *s: torch.randn(*s, dtype=torch.bfloat16) * 0.8)(D, A) * (1.0 / D ** 0.5)), 'b': _w((lambda *s: torch.randn(*s, dtype=torch.bfloat16) * 0.8)(A)), 'h': _w((lambda *s: torch.randn(*s, dtype=torch.bfloat16) * 0.8)(A)), 'p': _w((lambda *s: torch.randn(*s, dtype=torch.bfloat16) * 0.2)(D))}

def reference(idx, table, ii, jj, W, b, h, p):
    emb = table[idx]
    ei = emb[:, ii, :].clone()
    ej = emb[:, jj, :].clone()
    pair = ei * ej
    hid = pair @ W + b
    hid = 0.5 * (hid + torch.abs(hid))
    e = hid @ h
    alpha = _softmax(e, axis=-1)
    pooled = torch.einsum('bp,bpd->bd', alpha, pair)
    return pooled @ p
```

```python
import re

def split_ops(s):
    out, depth, cur = [], 0, ""
    for ch in s:
        if ch == "[": depth += 1
        if ch == "]": depth -= 1
        if ch == "," and depth == 0:
            out.append(cur.strip()); cur = ""
        else:
            cur += ch
    if cur.strip(): out.append(cur.strip())
    return out

REG = re.compile(r"^-?\|?([vs])(?:(\d+)|\[(\d+):(\d+)\])\|?$")
def regs(tok):
    tok = tok.split(" ")[0]
    if tok == "vcc": return {("s", 106), ("s", 107)}
    if tok == "vcc_lo": return {("s", 106)}
    if tok == "vcc_hi": return {("s", 107)}
    if tok == "exec": return {("s", 126), ("s", 127)}
    m = REG.match(tok)
    if not m: return set()
    if m.group(2) is not None: return {(m.group(1), int(m.group(2)))}
    return {(m.group(1), i) for i in range(int(m.group(3)), int(m.group(4)) + 1)}

TRANS = ("v_exp_", "v_rcp_", "v_log_", "v_rsq_", "v_sqrt_")
class I:
    def __init__(self, text):
        self.text = text
        t = text.split(";")[0].strip()
        self.label = t.endswith(":")
        self.directive = t.startswith(".") or t == ""
        self.mn = t.split()[0] if t else ""
        rest = t[len(self.mn):].strip()
        ops = split_ops(rest) if not (self.label or self.directive) else []
        self.ops = ops
        mn = self.mn
        R = [regs(o) for o in ops]
        self.w = set(); self.r = set(); self.kind = "other"
        self.ab = set(); self.c = set(); self.passes = 0; self.data = set()
        U = lambda xs: set().union(*xs) if xs else set()
        if self.label or self.directive: self.kind = "none"
        elif mn.startswith("v_mfma"):
            self.kind = "mfma"; self.w = R[0]; self.ab = R[1] | R[2]; self.c = R[3]; self.r = self.ab | self.c
            self.passes = 8 if "32x32x16" in mn else 4
        elif mn.startswith("v_smfmac"):
            self.kind = "mfma"; self.w = R[0]; self.ab = R[1] | R[2] | R[3]; self.c = R[0]; self.r = self.ab | self.c
            self.passes = 4; assert "16x16x64" in mn
        elif mn.startswith("v_"):
            self.kind = "valu"; self.w = set(R[0]); self.r = U(R[1:])
            if mn.startswith(("v_fmac", "v_pk_fmac")): self.r |= R[0]
            if mn.startswith("v_permlane"): self.w = R[0] | R[1]; self.r = R[0] | R[1]
            if "_dpp" in mn: self.r |= R[0]
        elif mn.startswith(("ds_read", "ds_bpermute", "ds_permute")):
            self.kind = "ds"; self.w = R[0]; self.r = U(R[1:])
        elif mn.startswith("ds_write"):
            self.kind = "ds"; self.r = U(R); self.data = U(R[1:])
        elif mn.startswith(("buffer_load", "global_load")):
            self.kind = "vmem"; self.w = R[0]; self.r = U(R[1:])
        elif mn.startswith(("buffer_store", "global_store", "global_atomic")):
            self.kind = "vmem"; self.r = U(R)
            self.data = R[0] if mn.startswith("buffer") else R[1]
        elif mn.startswith(("s_load", "s_memtime", "s_memrealtime")):
            self.kind = "smem"; self.w = R[0]; self.r = U(R[1:])
        elif mn.startswith("s_"):
            self.kind = "salu"
            if mn.startswith(("s_cmp", "s_cbranch", "s_branch", "s_nop", "s_waitcnt", "s_setprio", "s_barrier", "s_endpgm", "s_bitcmp")):
                self.r = U(R)
            else:
                self.w = set(R[0]); self.r = U(R[1:])
        else:
            raise ValueError("unknown instruction " + text)
        self.trans = mn.startswith(TRANS)
    def states(self):
        if self.kind == "none": return 0
        if self.mn == "s_nop": return int(self.ops[0]) + 1
        return 1

def V(s): return {x for x in s if x[0] == "v"}
def S(s): return {x for x in s if x[0] == "s"}

def need(a, b):
    n = 0
    if a.kind == "valu":
        wv, ws = V(a.w), S(a.w)
        if b.kind == "mfma" and wv & b.r: n = max(n, 2)
        if b.kind == "valu":
            if a.trans and not b.trans and wv & b.r: n = max(n, 1)
            if a.trans and b.trans and wv & b.r: n = max(n, 1)
            if b.mn.startswith("v_permlane") and wv & b.r: n = max(n, 2)
            if "_dpp" in b.mn and wv & b.r: n = max(n, 2)
            if b.mn.startswith(("v_readfirstlane", "v_readlane")) and wv & b.r: n = max(n, 1)
            if ws & b.r: n = max(n, 2)
            if "op_sel" in a.text and wv & (b.r | b.w): n = max(n, 1)
        if b.kind == "vmem" and ws & b.r: n = max(n, 5)
        if b.kind == "salu" and ws & b.r: n = max(n, 1)
    if a.kind == "mfma":
        big = a.passes == 8
        if b.kind == "mfma":
            if a.w & b.ab: n = max(n, 12 if big else 8)
            if a.w & b.c and not (a.w == b.c and a.passes == b.passes): n = max(n, 10 if big else 6)
            if a.w & b.w and not (a.w == b.w and a.passes == b.passes): n = max(n, 12 if big else 8)
        elif b.kind in ("valu", "ds", "vmem"):
            if a.w & (b.r | b.w): n = max(n, 12 if big else 8)
            if a.c & b.w: n = max(n, 7 if big else 3)
    if a.kind == "vmem" and len(a.data) >= 3 and b.kind in ("valu", "ds", "vmem", "mfma") and a.data & b.w: n = max(n, 2)
    if a.kind == "ds" and len(a.data) >= 3 and b.kind in ("valu", "mfma") and a.data & b.w: n = max(n, 2)
    return n

def deficit(prev, b):
    d, worst = 0, 0
    for a in reversed(prev):
        if d >= 13: break
        if a.kind == "none": continue
        worst = max(worst, need(a, b) - d)
        d += a.states()
    return worst

def pad(block, before=()):
    out = []
    befores = [list(x) for x in before] or [[]]
    for b in block:
        if b.kind != "none":
            n = max(deficit(pre + out, b) for pre in befores)
            if n > 0:
                out.append(I(f"s_nop {n-1}"))
        out.append(b)
    return out

WAIT = re.compile(r"(vmcnt|lgkmcnt)\((\d+)\)")
def check_trace(trace):
    vq, lq, prev = [], [], []
    for b in trace:
        if b.kind == "none": continue
        assert deficit(prev, b) <= 0, ("hazard", b.text, [x.text for x in prev[-14:]])
        if b.mn == "s_waitcnt":
            for nm, n in WAIT.findall(b.text):
                n = int(n)
                if nm == "vmcnt": vq = vq[len(vq)-n:] if n < len(vq) else vq
                else:
                    assert n <= 15
                    if any(x.kind == "smem" for x in lq): assert n == 0, "counted lgkm wait with smem in flight"
                    lq = lq[len(lq)-n:] if n < len(lq) else lq
        else:
            for q, same in ((vq, "vmem"), (lq, "ds")):
                for a in q:
                    bad = a.w & (b.r | b.w)
                    if bad and b.kind == same == a.kind and not (a.w & b.r): bad = None
                    assert not bad, ("pending load", a.text, b.text)
            if b.kind == "vmem": vq.append(b)
            if b.kind in ("ds", "smem"): lq.append(b)
        prev.append(b)
        if len(prev) > 40: prev = prev[-20:]

class Emitter:
    def __init__(self):
        self.ins = []; self.vq = []; self.lq = []
    def __call__(self, text):
        for line in text.strip().split("\n"):
            i = I(line.strip())
            if i.mn == "s_waitcnt":
                for nm, n in WAIT.findall(i.text):
                    n = int(n)
                    if nm == "vmcnt": self.vq = self.vq[len(self.vq)-n:] if n < len(self.vq) else self.vq
                    else: self.lq = self.lq[len(self.lq)-n:] if n < len(self.lq) else self.lq
            if i.kind == "vmem": self.vq.append(i)
            if i.kind in ("ds", "smem"): self.lq.append(i)
            self.ins.append(i)
    def count(self, q, rs):
        last = -1
        for k, a in enumerate(q):
            if a.w & rs: last = k
        return None if last < 0 else len(q) - 1 - last
    def wait(self, *toks):
        rs = set().union(*[regs(t) for t in toks])
        a, b = self.count(self.vq, rs), self.count(self.lq, rs)
        parts = []
        if a is not None: parts.append(f"vmcnt({a})")
        if b is not None: parts.append(f"lgkmcnt({min(b,15)})")
        if parts: self("s_waitcnt " + " ".join(parts))
        return bool(parts)
    def take(self):
        x, self.ins = self.ins, []
        return x
```

```python
import sys, struct, math
from asmlib import *

NAME = "standalone__factorization_afm__recsys"
OPT = dict(stamps=0, force_slow=0, align=1, prio=1)
for a in sys.argv[2:]:
    k, v = a.split("="); OPT[k] = int(v)

def f32(x): return "0x%08x" % struct.unpack("<I", struct.pack("<f", x))[0]
def r(b, n=1): return f"v{b}" if n == 1 else f"v[{b}:{b+n-1}]"

IDX, R0, R1, R3, R4, RT2, RT3, RB, RU, RV, RZ, RM, RW = range(1, 14)
SUM, ACC, T0, T1, ZS, AS, CH16, T2 = range(14, 22)
OFF1, INF, C, D0, W, ALS, AH, AID, P0, Q, SD, RAW, F = 22, 28, 32, 48, 80, 88, 96, 104, 112, 128, 136, 148, 172
NF = 9
SPARE = 244
CH, WLDS = 2080, 8320
LOG2E = math.log2(math.e)
PSH = 6
S_MPAR, S_MT, S_MB, S_M0, S_M1, S_FLAG, S_JOB, S_T = 24, 26, 28, 30, 32, 34, 35, 36
def sp(b): return f"s[{b}:{b+1}]"

VERT = {}
for nm, o in (("A", 0), ("B", 1), ("C", 2)):
    for x, reg in ((0, R0), (1, R1), (3, R3)):
        VERT[f"{nm}{x}"] = (reg, 512 * o, (lambda c, o=o, x=x: (o, (x + c) % 8)))
VERT["I1"] = (RB, 1536, lambda c: (3, 0))
VERT["I2"] = (RB, 1552, lambda c: (3, 1))
VERT["T1"] = (R4, 0, lambda c: (0, (c + 4) % 8))
VERT["T2"] = (RT2, 512, lambda c: (2 if c >= 4 else 1, (c + 4) % 8))
VERT["T3"] = (RT3, 1024, lambda c: (1 if c >= 4 else 2, (c + 4) % 8))
VERT["U"] = (RU, 0, lambda c: (3, 0) if c >= 4 else (0, c))
VERT["V"] = (RV, 0, lambda c: (3, 1) if c >= 4 else (0, c + 4))
STEPS = """A0A1 A0A3 A1A3 A0B0 A1B0 A3B0 A0B1 A3B1 B0B1 A0B3 A1B3 B0B3 B1B3
A0C3 A1C3 B0C3 B1C3 A1C0 B1C0 C0C3 A0C0 B0C0 A3C0 B3C0 C1C3 A3C1 B3C1 A0C1 B0C1 C0C1
I1A0 I1B0 I1C0 I2A0 I2B0 I2C0 T1B0 T1C0 T2B0 T3C0""".split()
STEPS = [(s[:2], s[2:]) for s in STEPS] + [("U", "V")]
NS = len(STEPS)
seen = set()
for q, (a, b) in enumerate(STEPS):
    for c in range(8):
        if q == NS - 1 and c >= 5: continue
        e = frozenset((VERT[a][2](c), VERT[b][2](c)))
        assert len(e) == 2 and e not in seen
        seen.add(e)
assert len(seen) == 325 and NS == 41
FIRST = {}; LAST = {}
for q, ab in enumerate(STEPS):
    for v in ab:
        FIRST.setdefault(v, q); LAST[v] = q
NK = (NS + 1) // 2

def stamp(E, n):
    if OPT["stamps"]:
        E(f"s_memrealtime s[{40+2*n}:{41+2*n}]")
        E(f"s_memtime s[{64+2*n}:{65+2*n}]")
        E("s_waitcnt lgkmcnt(0)")

I0 = P0
GI = Q
W32, BB, W16, HB, PB, XX, YY, TM = F, F + 8, F + 16, F + 24, F + 28, F + 32, F + 36, F + 40

def loads(E, first):
    u, a, va, vb, x8, y4, h16, k16, aw, aw16 = range(TM, TM + 10)
    if first:
        E(f"""s_load_dwordx2 s[4:5], s[0:1], 0
        s_load_dwordx2 s[20:21], s[0:1], 8
        s_load_dwordx8 s[8:15], s[0:1], 32
        s_load_dwordx2 s[16:17], s[0:1], 64""")
    E(f"""v_lshrrev_b32 v{a}, 4, v0
    s_mul_i32 s18, s2, 6656
    v_bfe_u32 v{u}, v0, 2, 2
    v_mul_u32_u24 v{a}, 104, v{a}
    s_movk_i32 s19, 416
    v_add_u32 v{a}, s18, v{a}
    v_and_b32 v{x8}, 8, v0
    v_mad_u32_u24 v{va}, v{u}, 24, v{a}
    v_and_b32 v{y4}, 4, v0
    v_mad_u32_u24 v{vb}, v{x8}, s19, v{a}
    v_lshrrev_b32 v{h16}, 1, v0
    v_add_u32 v{vb}, v{vb}, v{y4}
    v_and_b32 v{h16}, 16, v{h16}
    v_and_b32 v{aw}, 19, v0
    v_and_b32 v{k16}, 48, v0
    v_lshl_add_u32 v{aw}, v{aw}, 6, v{h16}
    v_and_b32 v{aw16}, 14, v0
    v_lshl_add_u32 v{aw}, v{y4}, 7, v{aw}
    v_lshl_add_u32 v{aw16}, v{aw16}, 7, v{k16}
    v_lshl_add_u32 v{aw}, v{x8}, 5, v{aw}
    v_and_b32 v{a}, 1, v0
    v_lshl_add_u32 v{aw16}, v{a}, 6, v{aw16}""")
    if first:
        E("""s_mov_b32 s22, 6400000
        s_mov_b32 s23, 0x00020000
        s_waitcnt lgkmcnt(0)""")
    E(f"""global_load_dwordx4 {r(I0,4)}, v{va}, s[4:5]
    global_load_dword v{I0+6}, v{vb}, s[4:5] offset:96
    global_load_dwordx2 {r(I0+4,2)}, v{va}, s[4:5] offset:16
    global_load_dwordx4 {r(OFF1,4)}, v{va}, s[4:5] offset:3328
    global_load_dwordx2 {r(OFF1+4,2)}, v{va}, s[4:5] offset:3344
    global_load_dwordx4 {r(W32,4)}, v{aw}, s[8:9]
    global_load_dwordx4 {r(W32+4,4)}, v{aw}, s[8:9] offset:32
    global_load_dwordx4 {r(BB,4)}, v{h16}, s[10:11]
    global_load_dwordx4 {r(BB+4,4)}, v{h16}, s[10:11] offset:32
    global_load_dwordx4 {r(HB,4)}, v{k16}, s[12:13]
    global_load_dwordx4 {r(PB,4)}, v{k16}, s[14:15]""")
    if first:
        E(f"""global_load_dwordx4 {r(W16,4)}, v{aw16}, s[8:9]
        global_load_dwordx4 {r(W16+4,4)}, v{aw16}, s[8:9] offset:128""")
    return u, y4

def lane_consts(E, u, y4):
    t, l16, one = TM + 10, TM + 11, TM + 12
    z = D0
    E(f"""v_lshrrev_b32 v{t}, 6, v0
    s_movk_i32 s18, {CH}
    v_mul_u32_u24 v{RZ}, {WLDS}, v{t}
    v_and_b32 v{t}, 3, v0
    v_lshlrev_b32 v{CH16}, 4, v{t}
    v_mad_u32_u24 v{RW}, v{t}, s18, v{RZ}
    v_bfe_u32 v{t}, v0, 4, 2
    v_lshl_add_u32 v{RW}, v{u}, 4, v{RW}
    v_lshl_add_u32 v{RW}, v{t}, 7, v{RW}
    v_bfe_u32 v{t}, v0, 5, 1
    v_mad_u32_u24 v{RB}, v{t}, s18, v{RZ}
    v_and_b32 v{t}, 24, v0
    v_and_b32 v{l16}, 7, v0
    v_lshl_add_u32 v{RB}, v{t}, 4, v{RB}
    v_lshl_add_u32 v{R0}, v{l16}, 4, v{RB}
    v_xor_b32 v{t}, 4, v{l16}
    v_lshl_add_u32 v{R4}, v{t}, 4, v{RB}
    v_add_u32 v{t}, 1, v{l16}
    v_and_b32 v{t}, 7, v{t}
    v_lshl_add_u32 v{R1}, v{t}, 4, v{RB}
    v_add_u32 v{t}, 3, v{l16}
    v_and_b32 v{t}, 7, v{t}
    v_lshl_add_u32 v{R3}, v{t}, 4, v{RB}
    v_lshlrev_b32 v{t}, 7, v{y4}
    s_mov_b32 s{S_MB}, 0xf0f0f0f0
    v_add_u32 v{RT2}, v{R4}, v{t}
    s_mov_b32 s{S_MB+1}, s{S_MB}
    v_sub_u32 v{RT3}, v{R4}, v{t}
    v_add_u32 v{t}, 1536, v{RB}
    s_mov_b32 s{S_M0}, 0xe0e0e0e0
    v_cndmask_b32_e64 v{RU}, v{R0}, v{t}, {sp(S_MB)}
    v_add_u32 v{t}, 16, v{t}
    s_mov_b32 s{S_M0+1}, -1
    v_cndmask_b32_e64 v{RV}, v{R4}, v{t}, {sp(S_MB)}
    v_add_u32 v{t}, 16, v{RZ}
    v_mov_b32 v{z}, 0xff800000
    v_cndmask_b32_e64 v{RM}, v{RZ}, v{t}, {sp(S_M0)}
    v_cndmask_b32_e64 v{z}, 0, v{z}, {sp(S_M0)}
    v_mov_b32 v{z+1}, 0
    v_mov_b64 {r(z+2,2)}, 0
    s_mov_b32 s{S_MPAR}, 0xaaaaaaaa
    ds_write_b128 v{RM}, {r(z,4)} offset:2048
    s_mov_b32 s{S_MPAR+1}, s{S_MPAR}
    v_mov_b32 v{t}, 0x4444
    v_mov_b32 v{IDX}, 0xeeee
    s_mov_b32 s{S_MT}, 0xcccccccc
    v_cndmask_b32_e64 v{IDX}, v{t}, v{IDX}, {sp(S_MPAR)}
    v_mov_b32 v{t}, 0x3f80
    s_mov_b32 s{S_MT+1}, s{S_MT}
    v_cndmask_b32_e64 v{one}, v{t}, 1.0, {sp(S_MPAR)}
    s_mov_b32 s{S_M0}, 3
    s_mov_b32 s{S_M0+1}, 48""")
    for R in range(8):
        sh = 8 * (R // 2) + 2 * (R % 2)
        m = S_M0
        if sh:
            m = S_M1 if R % 2 else S_T
            E(f"s_lshl_b64 {sp(m)}, {sp(S_M0)}, {sh}")
        E(f"v_cndmask_b32_e64 v{AID+R}, 0, v{one}, {sp(m)}")

def gather(E, idx, dst):
    E(f"buffer_load_dwordx4 {r(dst,4)}, v{idx}, s[20:23], 0 offen")

def gathers0(E):
    for t, (i, d) in enumerate([(I0+0, RAW), (I0+1, RAW+4), (I0+2, RAW+8), (I0+3, RAW+12), (I0+6, GI), (I0+4, RAW+16), (I0+5, RAW+20)]):
        E.wait(f"v{i}")
        E(f"v_lshl_add_u32 v{i}, v{i}, 6, v{CH16}")
        gather(E, i, d)
    E.wait(r(OFF1, 6))
    for t in range(6):
        E(f"v_lshl_add_u32 v{OFF1+t}, v{OFF1+t}, 6, v{CH16}")

def params(E, fast):
    D1 = D0 + 16
    E.wait(r(W32, 8))
    E(f"v_mfma_f32_32x32x16_bf16 {r(D1,16)}, {r(W32,4)}, {r(AID,4)}, 0")
    E(f"v_mfma_f32_32x32x16_bf16 {r(D1,16)}, {r(W32+4,4)}, {r(AID+4,4)}, {r(D1,16)}")
    E.wait(r(BB, 8))
    E(f"v_mfma_f32_32x32x16_bf16 {r(C,16)}, {r(AID,4)}, {r(BB,4)}, 0")
    E(f"v_mfma_f32_32x32x16_bf16 {r(C,16)}, {r(AID+4,4)}, {r(BB+4,4)}, {r(C,16)}")
    E.wait(r(HB, 8))
    vh, vp, pf, kk = TM, TM + 2, TM + 4, TM + 8
    for j in range(2):
        E(f"v_cndmask_b32_e64 v{vh+j}, v{HB+2*j}, v{HB+2*j+1}, {sp(S_MPAR)}")
        E(f"v_cndmask_b32_e64 v{vp+j}, v{PB+2*j}, v{PB+2*j+1}, {sp(S_MPAR)}")
    if fast:
        E.wait(r(W16, 8))
        E(f"v_mfma_f32_16x16x32_bf16 {r(XX,4)}, {r(W16,4)}, {r(HB,4)}, 0")
        E(f"v_mfma_f32_16x16x32_bf16 {r(YY,4)}, {r(W16+4,4)}, {r(HB,4)}, 0")
    E(f"s_mov_b32 s{S_M0}, 0x00030003\ns_mov_b32 s{S_M0+1}, s{S_M0}")
    for g in range(4):
        m = S_M0
        if g:
            m = S_M1 if g % 2 else S_T
            E(f"s_lshl_b64 {sp(m)}, {sp(S_M0)}, {4*g}")
        for j in range(2):
            E(f"v_cndmask_b32_e64 v{AH+2*g+j}, 0, v{vh+j}, {sp(m)}")
    if fast:
        E(f"s_mov_b32 s18, {f32(LOG2E/2)}")
        E(f"s_mov_b32 s19, {f32(2.0**-7)}")
        for j in range(2):
            E(f"v_lshlrev_b32 v{pf+2*j}, 16, v{vp+j}")
            E(f"v_and_b32 v{pf+2*j+1}, 0xffff0000, v{vp+j}")
        E(f"v_mov_b32 v{kk}, s18")
        E(f"v_mov_b32 v{kk+1}, {f32(2.0**PSH)}")
        E(f"v_cmp_le_f32_e64 vcc, s19, |v{D1}|")
        E(f"v_cndmask_b32_e64 v{kk+1}, v{kk}, v{kk+1}, {sp(S_MT)}")
        for k in range(8):
            E(f"v_mul_f32 v{D1+2*k}, v{kk}, v{D1+2*k}")
            E(f"v_mul_f32 v{D1+2*k+1}, v{kk}, v{D1+2*k+1}")
            if k == 0:
                E(f"s_cmp_eq_u64 vcc, 0\ns_cselect_b32 s{S_FLAG}, 1, {OPT['force_slow']}")
            E(f"v_cvt_pk_f16_f32 v{W+k}, v{D1+2*k}, v{D1+2*k+1}")
        for k in range(16):
            E(f"v_mul_f32 v{C+k}, v{kk}, v{C+k}")
        for k in range(4):
            E(f"v_cndmask_b32_e64 v{XX+k}, v{XX+k}, v{YY+k}, {sp(S_MPAR)}")
            E(f"v_cndmask_b32_e64 v{XX+k}, v{XX+k}, v{pf+k}, {sp(S_MT)}")
            E(f"v_mul_f32 v{XX+k}, v{kk+1}, v{XX+k}")
        E(f"v_cmp_le_f32_e64 vcc, s19, |v{XX}|")
        for j in range(2):
            E(f"v_cvt_pk_f16_f32 v{vp+j}, v{XX+2*j}, v{XX+2*j+1}")
        E(f"""s_and_b64 {sp(S_T)}, vcc, {sp(S_MT)}
        s_cselect_b32 s{S_FLAG}, s{S_FLAG}, 1
        s_andn2_b64 {sp(S_T)}, vcc, {sp(S_MT)}
        s_cselect_b32 s{S_FLAG}, s{S_FLAG}, 1""")
    else:
        for k in range(8):
            E(f"v_cvt_pk_bf16_f32 v{W+k}, v{D1+2*k}, v{D1+2*k+1}")
    E(f"s_mov_b32 s{S_M0}, {'0x000f000f' if fast else '0x000c000c'}\ns_mov_b32 s{S_M0+1}, s{S_M0}")
    for g in range(4):
        m = S_M0
        if g:
            m = S_M1 if g % 2 else S_T
            E(f"s_lshl_b64 {sp(m)}, {sp(S_M0)}, {4*g}")
        for j in range(2):
            E(f"v_cndmask_b32_e64 v{ALS+2*g+j}, 0, v{vp+j}, {sp(m)}")

PRE = ["A0", "A1", "A3", "B0"]
def slot_reg(s): return F + 8 * s
def rd(E, v, s, t):
    reg, off, _ = VERT[v]
    E(f"ds_read_b128 {r(slot_reg(s)+4*t,4)}, v{reg} offset:{off + 2*CH*t}")
def zinit(E, k):
    E(f"ds_read_b128 {r(SD+4*(k%3),4)}, v{RM if k == NK-1 else RZ} offset:2048")

def conv(E, job, fast):
    D1 = D0 + 16; DI = slot_reg(NF - 2)
    def mm(d, g, hi):
        E.wait(r(g, 4))
        E(f"v_mfma_f32_32x32x16_bf16 {r(d,16)}, {r(AID+4*hi,4)}, {r(g,4)}, {r(d,16) if hi else 0}")
    def cv(dst, d, ks):
        for k in ks: E(f"v_cvt_pk_f16_f32 v{dst+k}, v{d+2*k}, v{d+2*k+1}")
    def wr(src, off):
        E.wait(r(src, 4))
        E(f"ds_write_b128 v{RW}, {r(src,4)} offset:{off}")
    P1 = P0 + 8
    if fast:
        mm(D0, RAW, 0); mm(D0, RAW+4, 1); mm(D1, RAW+8, 0); mm(D1, RAW+12, 1)
        if job == 0: mm(DI, GI, 0)
        E(f"s_mov_b32 s19, {f32(0.125)}")
        E(f"v_cmp_le_f32_e64 vcc, s19, |v{D0}|")
        cv(P1, D0, range(4)); wr(P1, 0)
        cv(P1, D0, range(4, 8))
        mm(D0, RAW+16, 0)
        wr(P1+4, 64)
        E(f"""s_and_b32 s18, vcc_lo, 0xffff
        s_cselect_b32 s{S_FLAG}, s{S_FLAG}, 1
        s_lshr_b32 s18, vcc_lo, 16
        s_cselect_b32 s{S_FLAG}, s{S_FLAG}, 1""")
        mm(D0, RAW+20, 1)
    else:
        wr(RAW, 0); wr(RAW+4, 64)
    for s, v in enumerate(PRE[:3]):
        rd(E, v, s, 0); rd(E, v, s, 1)
    if fast:
        E(f"""s_and_b32 s18, vcc_hi, 0xffff
        s_cselect_b32 s{S_FLAG}, s{S_FLAG}, 1
        s_lshr_b32 s18, vcc_hi, 16
        s_cselect_b32 s{S_FLAG}, s{S_FLAG}, 1""")
        if job == 0:
            for t in range(6): gather(E, OFF1+t, RAW+4*t)
        cv(Q, D1, range(4)); wr(Q, 512)
        cv(Q, D1, range(4, 8)); wr(Q+4, 576)
    else:
        wr(RAW+8, 512); wr(RAW+12, 576)
    zinit(E, 0)
    rd(E, PRE[3], 3, 0); rd(E, PRE[3], 3, 1)
    if job == 0:
        if fast: cv(INF, DI, range(4))
        else:
            E.wait(r(GI, 4))
            E(f"v_mov_b64 {r(INF,2)}, {r(GI,2)}\nv_mov_b64 {r(INF+2,2)}, {r(GI+2,2)}")
    wr(INF, 1536 - 32 * job)
    if fast:
        cv(P1, D0, range(4)); wr(P1, 1024)
        cv(P1, D0, range(4, 8)); wr(P1+4, 1088)
    else:
        wr(RAW+16, 1024); wr(RAW+20, 1088)

EV = [RAW + k for k in range(21)]
SV = [RAW+21, RAW+22, RAW+23] + [AID + k for k in range(8)] + [SPARE + k for k in range(10)]
def main(E, fast):
    slot = {v: s for s, v in enumerate(PRE)}
    free = list(range(len(PRE), NF))
    todo = sorted([v for v in VERT if v not in PRE], key=lambda v: FIRST[v])
    half = []
    zq = list(range(1, NK))
    zfree = {1: -9, 2: -9}
    ty = "f16" if fast else "bf16"
    def pk(q, ks):
        if not 0 <= q < NS: return
        a, b = (slot_reg(slot[v]) for v in STEPS[q]); P = P0 + 8 * (q % 2)
        for k in ks:
            if fast: E(f"v_pk_mul_f16 v{P+k}, v{a+k}, v{b+k}")
            else:
                E(f"""v_lshlrev_b32 v{T0}, 16, v{a+k}
                v_lshlrev_b32 v{T1}, 16, v{b+k}
                v_mul_f32 v{T0}, v{T0}, v{T1}
                v_and_b32 v{T1}, 0xffff0000, v{a+k}
                v_and_b32 v{T2}, 0xffff0000, v{b+k}
                v_mul_f32 v{T1}, v{T1}, v{T2}
                v_cvt_pk_bf16_f32 v{P+k}, v{T0}, v{T1}""")
    def cvt(q, ks):
        if not 0 <= q < NS: return
        D = D0 + 16 * (q % 2)
        for k in ks:
            if fast: E(f"v_cvt_pk_bf16_f32 v{Q+k}, |v{D+2*k}|, |v{D+2*k+1}|")
            else: E(f"v_cvt_pk_bf16_f32 v{Q+k}, v{D+2*k}, v{D+2*k+1}\nv_pk_max_i16 v{Q+k}, v{Q+k}, 0")
    def shadow(q):
        cand = []
        if zq and zfree.get(zq[0], 99) <= q: cand.append((2 * zq[0] - 0.5, "z"))
        if half: cand.append((FIRST[half[0]] - 1, "h"))
        elif todo and free: cand.append((FIRST[todo[0]] - 1, "f"))
        if not cand: return
        what = min(cand)[1]
        if what == "z": zinit(E, zq.pop(0))
        elif what == "h":
            v = half.pop(0); rd(E, v, slot[v], 1)
        else:
            v = todo.pop(0); slot[v] = free.pop(0); rd(E, v, slot[v], 0); half.append(v)
    def soft(k, part):
        if not 0 <= k < NK: return []
        sd = SD + 4 * (k % 3)
        if not fast:
            return [f"v_add_f32 v{EV[k]}, v{sd}, v{sd+1}", f"v_add_f32 v{SV[k]}, v{sd+2}, v{sd+3}"] if part == 0 else []
        w = SUM if k == 0 else T0
        if part == 0: return [f"v_add_f32 v{T0}, v{sd}, v{sd+1}", f"v_exp_f32 v{w}, v{T0}"]
        if k == 0: return [f"v_mul_f32 v{ACC}, v{w}, v{sd+2}", f"v_fmac_f32 v{ACC}, v{w}, v{sd+3}"]
        return [f"v_add_f32 v{SUM}, v{SUM}, v{w}", f"v_fmac_f32 v{ACC}, v{w}, v{sd+2}", f"v_fmac_f32 v{ACC}, v{w}, v{sd+3}"]
    E.wait(r(slot_reg(0), 16))
    pk(0, range(8))
    for q in range(NS + 1):
        live = q < NS
        P = P0 + 8 * (q % 2); D = D0 + 16 * (q % 2)
        so = soft((q - 3) // 2, 0) if q % 2 else soft((q - 4) // 2, 1)
        if live: E(f"v_mfma_f32_32x32x16_{ty} {r(D,16)}, {r(W,4)}, {r(P,4)}, {r(C,16)}")
        cvt(q - 1, range(6))
        if live: E(f"v_mfma_f32_32x32x16_{ty} {r(D,16)}, {r(W+4,4)}, {r(P+4,4)}, {r(D,16)}")
        nxt = [r(slot_reg(slot[v]), 8) for v in STEPS[q + 1]] if q + 1 < NS else []
        if live: E.wait(r(SD + 4 * ((q // 2) % 3), 4), *nxt)
        if so: E(so.pop(0))
        cvt(q - 1, range(6, 8))
        pk(q + 1, range(4))
        if q % 2 == 0:
            while so: E(so.pop(0))
            if q >= 4: zfree[(q - 4) // 2 + 3] = q
        if live: E(f"v_smfmac_f32_16x16x64_{ty} {r(SD+4*((q//2)%3),4)}, {r(ALS+4*(q%2),4)}, {r(P,8)}, v{IDX}")
        shadow(q)
        pk(q + 1, range(4, 6))
        if q >= 1: E(f"v_smfmac_f32_16x16x64_bf16 {r(SD+4*(((q-1)//2)%3),4)}, {r(AH+4*((q-1)%2),4)}, {r(Q,8)}, v{IDX}")
        shadow(q)
        pk(q + 1, range(6, 8))
        while so: E(so.pop(0))
        if q + 1 < NS:
            for v in STEPS[q + 1]:
                if LAST[v] == q + 1: free.append(slot[v])
    assert not todo and not half and not zq
    for x in soft(NK - 2, 1) + soft(NK - 1, 0) + soft(NK - 1, 1): E(x)
    if not fast:
        E(f"v_max3_f32 v{T0}, v{EV[0]}, v{EV[1]}, v{EV[2]}")
        for k in range(3, NK, 2): E(f"v_max3_f32 v{T0}, v{T0}, v{EV[k]}, v{EV[k+1]}")
        for ctl in ("quad_perm:[1,0,3,2]", "quad_perm:[2,3,0,1]", "row_half_mirror"):
            E(f"v_max_f32_dpp v{T0}, v{T0}, v{T0} {ctl} row_mask:0xf bank_mask:0xf")
        E(f"v_mov_b32 v{T1}, v{T0}\nv_permlane32_swap_b32 v{T0}, v{T1}\nv_max_f32 v{T0}, v{T0}, v{T1}")
        E(f"v_mov_b32 v{SUM}, 0\nv_mov_b32 v{ACC}, 0")
        for k in range(NK):
            E(f"""v_sub_f32 v{T1}, v{EV[k]}, v{T0}
            v_mul_f32 v{T1}, {f32(LOG2E)}, v{T1}
            v_exp_f32 v{T1}, v{T1}
            v_add_f32 v{SUM}, v{SUM}, v{T1}
            v_fmac_f32 v{ACC}, v{T1}, v{SV[k]}""")

def final(E, fast):
    E(f"""v_permlane32_swap_b32 v{ZS}, v{SUM}
    v_permlane32_swap_b32 v{AS}, v{ACC}
    v_add_f32 v{SUM}, v{ZS}, v{SUM}
    v_add_f32 v{ACC}, v{AS}, v{ACC}
    v_lshrrev_b32 v{T0}, 6, v0""")
    fill = [f"v_bfe_u32 v{T1}, v0, 3, 2", f"v_lshl_add_u32 v{T0}, v{T0}, 2, v{T1}", f"v_and_b32 v{T1}, 32, v0"]
    for ctl in ("quad_perm:[1,0,3,2]", "quad_perm:[2,3,0,1]", "row_half_mirror"):
        E(f"v_add_f32_dpp v{SUM}, v{SUM}, v{SUM} {ctl} row_mask:0xf bank_mask:0xf")
        E(f"v_add_f32_dpp v{ACC}, v{ACC}, v{ACC} {ctl} row_mask:0xf bank_mask:0xf")
        E(fill.pop(0))
    E(f"""v_rcp_f32 v{ZS}, v{SUM}
    s_lshl_b32 s18, s2, 6
    v_add3_u32 v{T0}, v{T0}, v{T1}, s18""")
    if fast:
        lo, hi = (127 - 64) << 23, (127 + 100) << 23
        E(f"""v_mul_f32 v{ACC}, {f32(2.0**-PSH)}, v{ACC}
        v_subrev_u32 v{SUM}, {lo}, v{SUM}
        v_mul_f32 v{ACC}, v{ACC}, v{ZS}
        v_cmp_lt_u32 vcc, {hi-lo}, v{SUM}
        s_movk_i32 s18, 0x207
        v_cmp_class_f32_e64 {sp(S_T)}, v{ACC}, s18
        v_lshlrev_b32 v{T0}, 1, v{T0}
        v_cvt_pk_bf16_f32 v{ACC}, v{ACC}, v{ACC}
        s_or_b64 {sp(S_T)}, vcc, {sp(S_T)}
        s_cbranch_scc1 L_slow
        s_cmp_lg_u32 s{S_FLAG}, 0
        s_cbranch_scc1 L_slow""")
    else:
        E(f"""v_mul_f32 v{ACC}, v{ACC}, v{ZS}
        v_lshlrev_b32 v{T0}, 1, v{T0}
        v_cvt_pk_bf16_f32 v{ACC}, v{ACC}, v{ACC}""")
    E(f"""s_mov_b32 exec_lo, 0x01010101
    s_mov_b32 exec_hi, 0x01010101
    global_store_short v{T0}, v{ACC}, s[16:17]""")

def dump_stamps(E, n):
    E("s_load_dwordx2 s[4:5], s[0:1], 80\ns_mov_b64 exec, 1\nv_lshrrev_b32 v1, 6, v0\ns_lshl_b32 s18, s2, 3\nv_add_u32 v1, s18, v1\nv_lshlrev_b32 v1, 7, v1\ns_waitcnt lgkmcnt(0)")
    for k in range(n):
        E(f"v_mov_b32 v2, s{40+2*k}\nv_mov_b32 v3, s{64+2*k}\nglobal_store_dwordx2 v1, v[2:3], s[4:5] offset:{8*k}\ns_nop 1")
    E("s_getreg_b32 s18, hwreg(HW_REG_HW_ID)\ns_getreg_b32 s19, hwreg(HW_REG_XCC_ID)\nv_mov_b32 v2, s18\nv_mov_b32 v3, s19\nglobal_store_dwordx2 v1, v[2:3], s[4:5] offset:120")

FLEX = ("v_add_f32", "v_exp_f32", "v_fmac_f32", "v_mul_f32")
def size(i):
    if i.kind == "none": return 0
    if i.kind in ("mfma", "ds", "vmem", "smem"): return 8
    if i.kind == "valu" and (i.mn.endswith("_e64") or i.mn.startswith(("v_pk_", "v_cvt_pk"))): return 8
    assert i.mn in FLEX or i.mn in ("s_waitcnt", "s_nop", "s_setprio"), i.text
    return 4
def align8(block):
    out, run = [], []
    def flush():
        if len(run) % 2:
            fl = [k for k, x in enumerate(run) if x.mn in FLEX]
            if fl:
                k = fl[-1] if fl[-1] % 2 == 0 else None
                k = next((j for j in reversed(fl) if j % 2 == 0), None)
                if k is not None: run[k] = I(run[k].text.replace(run[k].mn, run[k].mn + "_e64", 1))
                else: run.append(I("s_nop 0"))
            else: run.append(I("s_nop 0"))
        out.extend(run); run.clear()
    for i in block:
        if size(i) == 4: run.append(i)
        else: flush(); out.append(i)
    flush()
    return out

def program(fast):
    E = Emitter(); sfx = "" if fast else "_x"
    prio = fast and OPT["prio"]
    if fast:
        E("s_cmp_ge_u32 s2, 256\ns_cbranch_scc1 L_end")
        stamp(E, 0)
        if prio: E("s_setprio 2")
    else:
        E("L_slow:\ns_setprio 0")
    u, y4 = loads(E, fast)
    lane_consts(E, u, y4)
    gathers0(E)
    if fast: stamp(E, 1)
    params(E, fast)
    E(f"s_mov_b32 s{S_JOB}, 0")
    if fast: stamp(E, 2)
    conv(E, 0, fast)
    if prio: E("s_setprio 1")
    if fast: stamp(E, 3)
    pre = pad(E.take())
    st = (list(E.vq), list(E.lq))
    main(E, fast)
    body = E.take()
    E(f"s_cmp_lg_u32 s{S_JOB}, 0\ns_cbranch_scc1 L_final{sfx}")
    tail = E.take()
    if fast: stamp(E, 4)
    if prio: E("s_setprio 2")
    E(f"s_mov_b32 s{S_JOB}, 1\nv_mov_b32 v{ZS}, v{SUM}\nv_mov_b32 v{AS}, v{ACC}")
    if not fast:
        for t in range(6): gather(E, OFF1+t, RAW+4*t)
    conv(E, 1, fast)
    if prio: E("s_setprio 0")
    if fast: stamp(E, 5)
    E(f"s_branch L_main{sfx}")
    mid = E.take()
    E.vq, E.lq = [], []
    E(f"L_final{sfx}:")
    if fast: stamp(E, 6)
    final(E, fast)
    if fast and OPT["stamps"]:
        stamp(E, 7); dump_stamps(E, 8)
    if fast: E("L_end:")
    E("s_endpgm")
    fin = E.take()
    mid0 = pad(mid)
    body = pad(body, [pre, mid0])
    if fast and OPT["align"]: body = align8(body)
    body += tail
    mid = pad(mid, [body]); fin = pad(fin, [body])
    check_trace(pre + body + mid + body + fin)
    return pre + [I(".p2align 3"), I(f"L_main{sfx}:")] + body + mid + fin

HEAD = open("cdna_kernels/" + NAME + ".s.ref").read().split("; Override launch")[0]
out = HEAD + f"""; @launch grid=(256,1,1) block=(512,1,1) lds={8*WLDS}
; Generated by gen/gen.py.
.amdgcn_target "amdgcn-amd-amdhsa--gfx950"
.text
.globl {NAME}_kernel
.p2align 8
.type {NAME}_kernel,@function
{NAME}_kernel:
"""
fastp, slowp = program(True), program(False)
for i in fastp + slowp:
    out += (i.text if i.kind == "none" else "    " + i.text) + "\n"
out += f""".section .rodata,"a"
.p2align 6
.amdhsa_kernel {NAME}_kernel
  .amdhsa_next_free_vgpr 256
  .amdhsa_next_free_sgpr 96
  .amdhsa_accum_offset 256
  .amdhsa_group_segment_fixed_size 0
  .amdhsa_kernarg_size 88
  .amdhsa_user_sgpr_count 2
  .amdhsa_user_sgpr_kernarg_segment_ptr 1
  .amdhsa_system_sgpr_workgroup_id_x 1
  .amdhsa_float_denorm_mode_32 3
.end_amdhsa_kernel
"""
open(sys.argv[1], "w").write(out)
nn = sum(int(i.ops[0]) + 1 for i in fastp if i.mn == "s_nop")
print("fast instrs", len(fastp), "nop states", nn, "slow instrs", len(slowp))
```

```python
import sys, os, subprocess, time
sys.path.insert(0, "cdna_kernels")
import numpy as np
HEAD = """; @launch grid=(256,1,1) block=({block},1,1) lds={lds}
.amdgcn_target "amdgcn-amd-amdhsa--gfx950"
.text
.globl mb_kernel
.p2align 8
.type mb_kernel,@function
mb_kernel:
    s_load_dwordx4 s[4:7], s[0:1], 0
    v_lshrrev_b32 v1, 6, v0
    s_nop 1
    v_readfirstlane_b32 s20, v1
    v_and_b32 v0, 63, v0
    v_lshlrev_b32 v1, 2, v0
    s_waitcnt lgkmcnt(0)
    s_mov_b32 s8, s4
    s_mov_b32 s9, s5
    s_mov_b32 s10, 0x100000
    s_mov_b32 s11, 0x00020000
    s_mov_b32 s12, s6
    s_mov_b32 s13, s7
    s_mov_b32 s14, 0x10000
    s_mov_b32 s15, 0x00020000
    s_mul_i32 s21, s2, {waves}
    s_add_u32 s21, s21, s20
    s_lshl_b32 s21, s21, 4
{loads}
    s_waitcnt vmcnt(0)
{init}
    s_mov_b32 s22, {iters}
    s_barrier
    s_memtime s[24:25]
    s_memrealtime s[26:27]
    s_waitcnt lgkmcnt(0)
.p2align 6
L_loop:
{body}
    s_sub_u32 s22, s22, 1
    s_cmp_lg_u32 s22, 0
    s_cbranch_scc1 L_loop
    s_memtime s[28:29]
    s_memrealtime s[30:31]
    s_waitcnt lgkmcnt(0)
    s_sub_u32 s28, s28, s24
    s_nop 15
    s_nop 15
    v_mov_b32 v4, s28
    v_mov_b32 v5, s26
    v_mov_b32 v6, s30
    v_mov_b32 v7, 0
    v_mov_b32 v2, s21
    v_cmp_eq_u32 vcc, 0, v0
    s_and_saveexec_b64 s[16:17], vcc
    s_cbranch_execz L_end
    buffer_store_dwordx4 v[4:7], v2, s[8:11], 0 offen
    s_waitcnt vmcnt(0)
L_end:
    s_endpgm
.section .rodata,"a"
.p2align 6
.amdhsa_kernel mb_kernel
  .amdhsa_next_free_vgpr 256
  .amdhsa_next_free_sgpr 96
  .amdhsa_accum_offset 256
  .amdhsa_group_segment_fixed_size 0
  .amdhsa_kernarg_size 16
  .amdhsa_user_sgpr_count 2
  .amdhsa_user_sgpr_kernarg_segment_ptr 1
  .amdhsa_system_sgpr_workgroup_id_x 1
  .amdhsa_float_denorm_mode_32 3
.end_amdhsa_kernel
"""
rng = np.random.default_rng(0)
def bf16r(x):
    u = np.asarray(x, np.float32).view(np.uint32).astype(np.uint64)
    return (((u + 0x7fff + ((u >> 16) & 1)) >> 16) & 0xffff).astype(np.uint32)
def bf2f(u): return (u.astype(np.uint32) << 16).view(np.float32)
def pack(lo, hi): return (lo | (hi << 16)).astype(np.uint32)
def h16(x): return np.asarray(x, np.float32).astype(np.float16).view(np.uint16).astype(np.uint32)
def gen(kind, n, scale=1.0):
    g = lambda: rng.standard_normal((n, 64)).astype(np.float32) * scale
    if kind == "zero": return np.zeros((n, 64), np.uint32)
    if kind == "f32": return g().view(np.uint32)
    if kind == "bf16": return pack(bf16r(g()), bf16r(g()))
    if kind == "absbf16": return pack(bf16r(abs(g())), bf16r(abs(g())))
    if kind == "f16": return pack(h16(g()), h16(g()))
    if kind == "f16_8": return pack(h16(bf2f(bf16r(g()))), h16(bf2f(bf16r(g()))))
    if kind == "prod16": return pack(h16(g()*g()), h16(g()*g()))
    if kind == "prod16_8": return pack(h16(bf2f(bf16r(g()*g()))), h16(bf2f(bf16r(g()*g()))))
    if kind == "prodbf": return pack(bf16r(g()*g()), bf16r(g()*g()))
    raise ValueError(kind)
_st = {}
def run(name, body, regs, waves=8, iters=20, per=1, init="", lds=0, reps=7):
    from cdna_launch import with_harness_metadata
    data = np.zeros((256, 64), np.uint32)
    for b, a in regs.items(): data[b:b+len(a)] = a
    loads = "\n".join(f"    s_movk_i32 s23, {i*256}\n    buffer_load_dword v{i}, v1, s[12:15], s23 offen" if i < 128 else f"    s_mov_b32 s23, {i*256}\n    buffer_load_dword v{i}, v1, s[12:15], s23 offen" for i in range(2, 256))
    src = HEAD.format(block=64*waves, lds=lds, waves=waves, iters=iters, body="\n".join("    "+x for x in body), loads=loads, init=init)
    src = with_harness_metadata(src, "mb_kernel", 2)
    os.makedirs("mbout", exist_ok=True)
    p = "pw.s"; open(p, "w").write(src)
    r = subprocess.run(["clang", "-x", "assembler", "-target", "amdgcn-amd-amdhsa", "-mcpu=gfx950", p, "-o", p[:-2] + ".co"], capture_output=True, text=True)
    if r.returncode: print(r.stderr[:2000]); raise SystemExit(1)
    if not os.path.exists('/dev/kfd'): print(name, "ok"); return
    from cdna_launch import AsmKernel, DeviceBuffer, pack_ptr_kernargs, _hip
    k = AsmKernel(p[:-2] + ".co", "mb_kernel")
    if "buf" not in _st: _st["buf"] = DeviceBuffer.from_numpy(np.zeros(0x100000 // 4, np.uint32))
    buf = _st["buf"]; d = DeviceBuffer.from_numpy(data)
    cy, ns = [], []
    for rep in range(reps):
        time.sleep(0.002)
        k.launch((256,1,1), (64*waves,1,1), pack_ptr_kernargs([buf.ptr, d.ptr]), lds); _hip.hipDeviceSynchronize()
        o = buf.to_numpy(np.uint32, (0x100000//16, 4))[:256*waves].astype(np.int64).reshape(256, waves, 4)
        c = o[:, :, 0].max(axis=1); t = (o[:, :, 2].max(axis=1) - o[:, :, 1].min(axis=1)) * 10.0
        cy.append(np.median(c)); ns.append(np.mean(t))
    u = iters * per * max(waves / 4, 1)
    c, t = np.median(cy[1:]), np.median(ns[1:])
    print(f"{name:44s} w={waves} total {t/1000:6.2f} us  cyc/unit {c/u:7.2f}  ns/unit {t/u:7.2f}  clock {c/t:5.3f} GHz  (ns spread {min(ns[1:])/u:.2f}-{max(ns[1:])/u:.2f})", flush=True)
    k.unload(); d.free()
```

```python
from pw import *
def r(b,n): return f"v[{b}:{b+n-1}]"
C,D,W,AL,AH,IDX,P,Q,SD,F=16,32,64,72,80,88,96,160,176,192
lane=np.arange(64)
def sparseA(kind, rows):
    v=gen(kind,2); A=np.zeros((8,64),np.uint32)
    for g in range(4):
        m=((lane%16)//4==g)&((lane%4)<rows)
        for j in range(2): A[2*g+j]=np.where(m,v[j],0)
    return A
def regs(w="f16", p="prod16", c="f32"):
    cc=gen(c,16); cc[:]=cc[:,[0]*32+[32]*32]
    return {C:cc, D:gen("f32",32), W:gen(w,8,0.14), AL:sparseA("f16",4), AH:sparseA("bf16",2), IDX:np.where(lane%2,0xeeee,0x4444)[None].astype(np.uint32),
            P:gen(p,64,0.8), Q:gen("absbf16",16), SD:gen("zero",16), F:gen("f16_8",64,0.8)}
def M(q,ty="f16"):
    d=D+16*(q%2); p=P+8*(q%8)
    return [f"v_mfma_f32_32x32x16_{ty} {r(d,16)}, {r(W,4)}, {r(p,4)}, {r(C,16)}", f"v_mfma_f32_32x32x16_{ty} {r(d,16)}, {r(W+4,4)}, {r(p+4,4)}, {r(d,16)}"]
def M16(q,ty="f16"):
    d=D+16*(q%2); p=P+8*(q%8)
    return [f"v_mfma_f32_16x16x32_{ty} {r(d+4*(2*j+i),4)}, {r(W+4*i,4)}, {r(p+4*j,4)}, {r(C+4*i,4)}" for j in range(2) for i in range(2)]
def SL(q): return f"v_smfmac_f32_16x16x64_f16 {r(SD+4*((q//2)%3),4)}, {r(AL+4*(q%2),4)}, {r(P+8*(q%8),8)}, v{IDX}"
def SH(q): return f"v_smfmac_f32_16x16x64_bf16 {r(SD+4*((q//2)%3),4)}, {r(AH+4*(q%2),4)}, {r(Q+8*(q%2),8)}, v{IDX}"
def PK(q, dst=None): return [f"v_pk_mul_f16 v{(dst or P+8*(q%8))+k}, v{F+8*(q%8)+k}, v{F+8*((q*3+1)%8)+k}" for k in range(8)]
def CV(q): return [f"v_cvt_pk_bf16_f32 v{Q+8*(q%2)+k}, |v{D+16*(q%2)+2*k}|, |v{D+16*(q%2)+2*k+1}|" for k in range(8)]
N=24
S=lambda f: sum([f(q) for q in range(N)], [])
L=lambda x: [x]
run("M32 f16 W11 P11", S(M), regs(), per=N, iters=6)
run("M32 f16 W8 P11", S(M), regs(w="f16_8"), per=N, iters=6)
run("M32 f16 W8 P8", S(M), regs(w="f16_8", p="prod16_8"), per=N, iters=6)
run("M32 bf16", S(lambda q:M(q,"bf16")), regs(w="bf16", p="prodbf"), per=N, iters=6)
run("M32 zero", S(M), regs(w="zero", p="zero", c="zero"), per=N, iters=6)
run("M16 f16 W11 P11", S(M16), regs(), per=N, iters=6)
run("M16 f16 W8 P11", S(M16), regs(w="f16_8"), per=N, iters=6)
run("M16 bf16", S(lambda q:M16(q,"bf16")), regs(w="bf16", p="prodbf"), per=N, iters=6)
run("SL only", S(lambda q:L(SL(q))), regs(), per=N, iters=24)
run("SH only", S(lambda q:L(SH(q))), regs(), per=N, iters=24)
run("PK only", S(PK), regs(), per=N, iters=12)
run("CV only", S(CV), regs(), per=N, iters=12)
def full(q, m=M, sl=True, sh=True, pk=True, cv=True):
    mm=m(q); c=CV(q-1) if cv else []; p=PK(q+1) if pk else []
    if len(mm)==2: o=[mm[0]]+c[:6]+[mm[1]]+c[6:]+p[:4]
    else: o=[mm[0]]+c[:3]+[mm[1]]+c[3:6]+[mm[2]]+c[6:]+p[:1]+[mm[3]]+p[1:4]
    return o+([SL(q)] if sl else [])+p[4:6]+([SH(q-1)] if sh else [])+p[6:]
for w in ("f16","f16_8"):
    run(f"full M32 W={w}", S(full), regs(w=w), per=N, iters=4)
    run(f"full M16 W={w}", S(lambda q:full(q,M16)), regs(w=w), per=N, iters=4)
run("full M32 no SL", S(lambda q:full(q,sl=False)), regs(w="f16_8"), per=N, iters=4)
run("full M32 no SH", S(lambda q:full(q,sh=False)), regs(w="f16_8"), per=N, iters=4)
run("full M32 no SL,SH", S(lambda q:full(q,sl=False,sh=False)), regs(w="f16_8"), per=N, iters=4)
run("full M32 no PK", S(lambda q:full(q,pk=False)), regs(w="f16_8"), per=N, iters=4)
run("full M32 no CV", S(lambda q:full(q,cv=False)), regs(w="f16_8"), per=N, iters=4)
run("full M32 1wave", S(full), regs(w="f16_8"), per=N, iters=8, waves=4)
for it in (1,2,16,64):
    run(f"full M32 iters={it}", S(full), regs(w="f16_8"), per=N, iters=it)
```

```python
import sys, struct, math
from asmlib import *

NAME = "standalone__factorization_afm__recsys"
OPT = dict(stamps=0, force_slow=0, align=1, prio=1)
for a in sys.argv[2:]:
    k, v = a.split("="); OPT[k] = int(v)

def f32(x): return "0x%08x" % struct.unpack("<I", struct.pack("<f", x))[0]
def r(b, n=1): return f"v{b}" if n == 1 else f"v[{b}:{b+n-1}]"

IDX, R0, R1, R3, R4, RT2, RT3, RB, RU, RV, RZ, RM, RW = range(1, 14)
SUM, ACC, T0, T1, ZS, AS, CH16, T2 = range(14, 22)
OFF1, INF, C, D0, W, ALS, AH, AID, P0, Q, SD, RAW, F = 22, 28, 32, 48, 80, 88, 96, 104, 112, 128, 136, 148, 172
NF = 9
SPARE = 244
CH, WLDS = 2080, 8320
LOG2E = math.log2(math.e)
PSH = 6
S_MPAR, S_MT, S_MB, S_M0, S_M1, S_FLAG, S_JOB, S_T = 24, 26, 28, 30, 32, 34, 35, 36
def sp(b): return f"s[{b}:{b+1}]"

VERT = {}
for nm, o in (("A", 0), ("B", 1), ("C", 2)):
    for x, reg in ((0, R0), (1, R1), (3, R3)):
        VERT[f"{nm}{x}"] = (reg, 512 * o, (lambda c, o=o, x=x: (o, (x + c) % 8)))
VERT["I1"] = (RB, 1536, lambda c: (3, 0))
VERT["I2"] = (RB, 1552, lambda c: (3, 1))
VERT["T1"] = (R4, 0, lambda c: (0, (c + 4) % 8))
VERT["T2"] = (RT2, 512, lambda c: (2 if c >= 4 else 1, (c + 4) % 8))
VERT["T3"] = (RT3, 1024, lambda c: (1 if c >= 4 else 2, (c + 4) % 8))
VERT["U"] = (RU, 0, lambda c: (3, 0) if c >= 4 else (0, c))
VERT["V"] = (RV, 0, lambda c: (3, 1) if c >= 4 else (0, c + 4))
STEPS = """A0A1 A0A3 A1A3 A0B0 A1B0 A3B0 A0B1 A3B1 B0B1 A0B3 A1B3 B0B3 B1B3
A0C3 A1C3 B0C3 B1C3 A1C0 B1C0 C0C3 A0C0 B0C0 A3C0 B3C0 C1C3 A3C1 B3C1 A0C1 B0C1 C0C1
I1A0 I1B0 I1C0 I2A0 I2B0 I2C0 T1B0 T1C0 T2B0 T3C0""".split()
STEPS = [(s[:2], s[2:]) for s in STEPS] + [("U", "V")]
NS = len(STEPS)
seen = set()
for q, (a, b) in enumerate(STEPS):
    for c in range(8):
        if q == NS - 1 and c >= 5: continue
        e = frozenset((VERT[a][2](c), VERT[b][2](c)))
        assert len(e) == 2 and e not in seen
        seen.add(e)
assert len(seen) == 325 and NS == 41
FIRST = {}; LAST = {}
for q, ab in enumerate(STEPS):
    for v in ab:
        FIRST.setdefault(v, q); LAST[v] = q
NK = (NS + 1) // 2

def stamp(E, n):
    if OPT["stamps"]:
        E(f"s_memrealtime s[{40+2*n}:{41+2*n}]")
        E(f"s_memtime s[{64+2*n}:{65+2*n}]")
        E("s_waitcnt lgkmcnt(0)")

I0 = P0
GI = Q
W32, BB, W16, HB, PB, XX, YY, TM = F, F + 8, F + 16, F + 24, F + 28, F + 32, F + 36, F + 40

def loads(E, first):
    u, a, va, vb, x8, y4, h16, k16, aw, aw16 = range(TM, TM + 10)
    if first:
        E(f"""s_load_dwordx2 s[4:5], s[0:1], 0
        s_load_dwordx2 s[20:21], s[0:1], 8
        s_load_dwordx8 s[8:15], s[0:1], 32
        s_load_dwordx2 s[16:17], s[0:1], 64""")
    E(f"""v_lshrrev_b32 v{a}, 4, v0
    s_mul_i32 s18, s2, 6656
    v_bfe_u32 v{u}, v0, 2, 2
    v_mul_u32_u24 v{a}, 104, v{a}
    s_movk_i32 s19, 416
    v_add_u32 v{a}, s18, v{a}
    v_and_b32 v{x8}, 8, v0
    v_mad_u32_u24 v{va}, v{u}, 24, v{a}
    v_and_b32 v{y4}, 4, v0
    v_mad_u32_u24 v{vb}, v{x8}, s19, v{a}
    v_lshrrev_b32 v{h16}, 1, v0
    v_add_u32 v{vb}, v{vb}, v{y4}
    v_and_b32 v{h16}, 16, v{h16}
    v_and_b32 v{aw}, 19, v0
    v_and_b32 v{k16}, 48, v0
    v_lshl_add_u32 v{aw}, v{aw}, 6, v{h16}
    v_and_b32 v{aw16}, 14, v0
    v_lshl_add_u32 v{aw}, v{y4}, 7, v{aw}
    v_lshl_add_u32 v{aw16}, v{aw16}, 7, v{k16}
    v_lshl_add_u32 v{aw}, v{x8}, 5, v{aw}
    v_and_b32 v{a}, 1, v0
    v_lshl_add_u32 v{aw16}, v{a}, 6, v{aw16}""")
    if first:
        E("""s_mov_b32 s22, 6400000
        s_mov_b32 s23, 0x00020000
        s_waitcnt lgkmcnt(0)""")
    E(f"""global_load_dwordx4 {r(I0,4)}, v{va}, s[4:5]
    global_load_dword v{I0+6}, v{vb}, s[4:5] offset:96
    global_load_dwordx2 {r(I0+4,2)}, v{va}, s[4:5] offset:16
    global_load_dwordx4 {r(OFF1,4)}, v{va}, s[4:5] offset:3328
    global_load_dwordx2 {r(OFF1+4,2)}, v{va}, s[4:5] offset:3344
    global_load_dwordx4 {r(W32,4)}, v{aw}, s[8:9]
    global_load_dwordx4 {r(W32+4,4)}, v{aw}, s[8:9] offset:32
    global_load_dwordx4 {r(BB,4)}, v{h16}, s[10:11]
    global_load_dwordx4 {r(BB+4,4)}, v{h16}, s[10:11] offset:32
    global_load_dwordx4 {r(HB,4)}, v{k16}, s[12:13]
    global_load_dwordx4 {r(PB,4)}, v{k16}, s[14:15]""")
    if first:
        E(f"""global_load_dwordx4 {r(W16,4)}, v{aw16}, s[8:9]
        global_load_dwordx4 {r(W16+4,4)}, v{aw16}, s[8:9] offset:128""")
    return u, y4

def lane_consts(E, u, y4):
    t, l16, one = TM + 10, TM + 11, TM + 12
    z = D0
    E(f"""v_lshrrev_b32 v{t}, 6, v0
    s_movk_i32 s18, {CH}
    v_mul_u32_u24 v{RZ}, {WLDS}, v{t}
    v_and_b32 v{t}, 3, v0
    v_lshlrev_b32 v{CH16}, 4, v{t}
    v_mad_u32_u24 v{RW}, v{t}, s18, v{RZ}
    v_bfe_u32 v{t}, v0, 4, 2
    v_lshl_add_u32 v{RW}, v{u}, 4, v{RW}
    v_lshl_add_u32 v{RW}, v{t}, 7, v{RW}
    v_bfe_u32 v{t}, v0, 5, 1
    v_mad_u32_u24 v{RB}, v{t}, s18, v{RZ}
    v_and_b32 v{t}, 24, v0
    v_and_b32 v{l16}, 7, v0
    v_lshl_add_u32 v{RB}, v{t}, 4, v{RB}
    v_lshl_add_u32 v{R0}, v{l16}, 4, v{RB}
    v_xor_b32 v{t}, 4, v{l16}
    v_lshl_add_u32 v{R4}, v{t}, 4, v{RB}
    v_add_u32 v{t}, 1, v{l16}
    v_and_b32 v{t}, 7, v{t}
    v_lshl_add_u32 v{R1}, v{t}, 4, v{RB}
    v_add_u32 v{t}, 3, v{l16}
    v_and_b32 v{t}, 7, v{t}
    v_lshl_add_u32 v{R3}, v{t}, 4, v{RB}
    v_lshlrev_b32 v{t}, 7, v{y4}
    s_mov_b32 s{S_MB}, 0xf0f0f0f0
    v_add_u32 v{RT2}, v{R4}, v{t}
    s_mov_b32 s{S_MB+1}, s{S_MB}
    v_sub_u32 v{RT3}, v{R4}, v{t}
    v_add_u32 v{t}, 1536, v{RB}
    s_mov_b32 s{S_M0}, 0xe0e0e0e0
    v_cndmask_b32_e64 v{RU}, v{R0}, v{t}, {sp(S_MB)}
    v_add_u32 v{t}, 16, v{t}
    s_mov_b32 s{S_M0+1}, -1
    v_cndmask_b32_e64 v{RV}, v{R4}, v{t}, {sp(S_MB)}
    v_add_u32 v{t}, 16, v{RZ}
    v_mov_b32 v{z}, 0xff800000
    v_cndmask_b32_e64 v{RM}, v{RZ}, v{t}, {sp(S_M0)}
    v_cndmask_b32_e64 v{z}, 0, v{z}, {sp(S_M0)}
    v_mov_b32 v{z+1}, 0
    v_mov_b64 {r(z+2,2)}, 0
    s_mov_b32 s{S_MPAR}, 0xaaaaaaaa
    ds_write_b128 v{RM}, {r(z,4)} offset:2048
    s_mov_b32 s{S_MPAR+1}, s{S_MPAR}
    v_mov_b32 v{t}, 0x4444
    v_mov_b32 v{IDX}, 0xeeee
    s_mov_b32 s{S_MT}, 0xcccccccc
    v_cndmask_b32_e64 v{IDX}, v{t}, v{IDX}, {sp(S_MPAR)}
    v_mov_b32 v{t}, 0x3f80
    s_mov_b32 s{S_MT+1}, s{S_MT}
    v_cndmask_b32_e64 v{one}, v{t}, 1.0, {sp(S_MPAR)}
    s_mov_b32 s{S_M0}, 3
    s_mov_b32 s{S_M0+1}, 48""")
    for R in range(8):
        sh = 8 * (R // 2) + 2 * (R % 2)
        m = S_M0
        if sh:
            m = S_M1 if R % 2 else S_T
            E(f"s_lshl_b64 {sp(m)}, {sp(S_M0)}, {sh}")
        E(f"v_cndmask_b32_e64 v{AID+R}, 0, v{one}, {sp(m)}")

def gather(E, idx, dst):
    E(f"buffer_load_dwordx4 {r(dst,4)}, v{idx}, s[20:23], 0 offen")

def gathers0(E):
    for t, (i, d) in enumerate([(I0+0, RAW), (I0+1, RAW+4), (I0+2, RAW+8), (I0+3, RAW+12), (I0+6, GI), (I0+4, RAW+16), (I0+5, RAW+20)]):
        E.wait(f"v{i}")
        E(f"v_lshl_add_u32 v{i}, v{i}, 6, v{CH16}")
        gather(E, i, d)
    E.wait(r(OFF1, 6))
    for t in range(6):
        E(f"v_lshl_add_u32 v{OFF1+t}, v{OFF1+t}, 6, v{CH16}")

def params(E, fast):
    D1 = D0 + 16
    E.wait(r(W32, 8))
    E(f"v_mfma_f32_32x32x16_bf16 {r(D1,16)}, {r(W32,4)}, {r(AID,4)}, 0")
    E(f"v_mfma_f32_32x32x16_bf16 {r(D1,16)}, {r(W32+4,4)}, {r(AID+4,4)}, {r(D1,16)}")
    E.wait(r(BB, 8))
    E(f"v_mfma_f32_32x32x16_bf16 {r(C,16)}, {r(AID,4)}, {r(BB,4)}, 0")
    E(f"v_mfma_f32_32x32x16_bf16 {r(C,16)}, {r(AID+4,4)}, {r(BB+4,4)}, {r(C,16)}")
    E.wait(r(HB, 8))
    vh, vp, pf, kk = TM, TM + 2, TM + 4, TM + 8
    for j in range(2):
        E(f"v_cndmask_b32_e64 v{vh+j}, v{HB+2*j}, v{HB+2*j+1}, {sp(S_MPAR)}")
        E(f"v_cndmask_b32_e64 v{vp+j}, v{PB+2*j}, v{PB+2*j+1}, {sp(S_MPAR)}")
    if fast:
        E.wait(r(W16, 8))
        E(f"v_mfma_f32_16x16x32_bf16 {r(XX,4)}, {r(W16,4)}, {r(HB,4)}, 0")
        E(f"v_mfma_f32_16x16x32_bf16 {r(YY,4)}, {r(W16+4,4)}, {r(HB,4)}, 0")
    E(f"s_mov_b32 s{S_M0}, 0x00030003\ns_mov_b32 s{S_M0+1}, s{S_M0}")
    for g in range(4):
        m = S_M0
        if g:
            m = S_M1 if g % 2 else S_T
            E(f"s_lshl_b64 {sp(m)}, {sp(S_M0)}, {4*g}")
        for j in range(2):
            E(f"v_cndmask_b32_e64 v{AH+2*g+j}, 0, v{vh+j}, {sp(m)}")
    if fast:
        E(f"s_mov_b32 s18, {f32(LOG2E/2)}")
        E(f"s_mov_b32 s19, {f32(2.0**-7)}")
        for j in range(2):
            E(f"v_lshlrev_b32 v{pf+2*j}, 16, v{vp+j}")
            E(f"v_and_b32 v{pf+2*j+1}, 0xffff0000, v{vp+j}")
        E(f"v_mov_b32 v{kk}, s18")
        E(f"v_mov_b32 v{kk+1}, {f32(2.0**PSH)}")
        E(f"v_cmp_le_f32_e64 vcc, s19, |v{D1}|")
        E(f"v_cndmask_b32_e64 v{kk+1}, v{kk}, v{kk+1}, {sp(S_MT)}")
        for k in range(8):
            E(f"v_mul_f32 v{D1+2*k}, v{kk}, v{D1+2*k}")
            E(f"v_mul_f32 v{D1+2*k+1}, v{kk}, v{D1+2*k+1}")
            if k == 0:
                E(f"s_cmp_eq_u64 vcc, 0\ns_cselect_b32 s{S_FLAG}, 1, {OPT['force_slow']}")
            E(f"v_cvt_pk_f16_f32 v{W+k}, v{D1+2*k}, v{D1+2*k+1}")
        for k in range(16):
            E(f"v_mul_f32 v{C+k}, v{kk}, v{C+k}")
        for k in range(4):
            E(f"v_cndmask_b32_e64 v{XX+k}, v{XX+k}, v{YY+k}, {sp(S_MPAR)}")
            E(f"v_cndmask_b32_e64 v{XX+k}, v{XX+k}, v{pf+k}, {sp(S_MT)}")
            E(f"v_mul_f32 v{XX+k}, v{kk+1}, v{XX+k}")
        E(f"v_cmp_le_f32_e64 vcc, s19, |v{XX}|")
        for j in range(2):
            E(f"v_cvt_pk_f16_f32 v{vp+j}, v{XX+2*j}, v{XX+2*j+1}")
        E(f"""s_and_b64 {sp(S_T)}, vcc, {sp(S_MT)}
        s_cselect_b32 s{S_FLAG}, s{S_FLAG}, 1
        s_andn2_b64 {sp(S_T)}, vcc, {sp(S_MT)}
        s_cselect_b32 s{S_FLAG}, s{S_FLAG}, 1""")
    else:
        for k in range(8):
            E(f"v_cvt_pk_bf16_f32 v{W+k}, v{D1+2*k}, v{D1+2*k+1}")
    E(f"s_mov_b32 s{S_M0}, {'0x000f000f' if fast else '0x000c000c'}\ns_mov_b32 s{S_M0+1}, s{S_M0}")
    for g in range(4):
        m = S_M0
        if g:
            m = S_M1 if g % 2 else S_T
            E(f"s_lshl_b64 {sp(m)}, {sp(S_M0)}, {4*g}")
        for j in range(2):
            E(f"v_cndmask_b32_e64 v{ALS+2*g+j}, 0, v{vp+j}, {sp(m)}")

PRE = ["A0", "A1", "A3", "B0"]
def slot_reg(s): return F + 8 * s
def rd(E, v, s, t):
    reg, off, _ = VERT[v]
    E(f"ds_read_b128 {r(slot_reg(s)+4*t,4)}, v{reg} offset:{off + 2*CH*t}")
def zinit(E, k):
    E(f"ds_read_b128 {r(SD+4*(k%3),4)}, v{RM if k == NK-1 else RZ} offset:2048")

def conv(E, job, fast):
    D1 = D0 + 16; DI = slot_reg(NF - 2)
    def mm(d, g, hi):
        E.wait(r(g, 4))
        E(f"v_mfma_f32_32x32x16_bf16 {r(d,16)}, {r(AID+4*hi,4)}, {r(g,4)}, {r(d,16) if hi else 0}")
    def cv(dst, d, ks):
        for k in ks: E(f"v_cvt_pk_f16_f32 v{dst+k}, v{d+2*k}, v{d+2*k+1}")
    def wr(src, off):
        E.wait(r(src, 4))
        E(f"ds_write_b128 v{RW}, {r(src,4)} offset:{off}")
    P1 = P0 + 8
    if fast:
        mm(D0, RAW, 0); mm(D0, RAW+4, 1); mm(D1, RAW+8, 0); mm(D1, RAW+12, 1)
        if job == 0: mm(DI, GI, 0)
        E(f"s_mov_b32 s19, {f32(0.125)}")
        E(f"v_cmp_le_f32_e64 vcc, s19, |v{D0}|")
        cv(P1, D0, range(4)); wr(P1, 0)
        cv(P1, D0, range(4, 8))
        mm(D0, RAW+16, 0)
        wr(P1+4, 64)
        E(f"""s_and_b32 s18, vcc_lo, 0xffff
        s_cselect_b32 s{S_FLAG}, s{S_FLAG}, 1
        s_lshr_b32 s18, vcc_lo, 16
        s_cselect_b32 s{S_FLAG}, s{S_FLAG}, 1""")
        mm(D0, RAW+20, 1)
    else:
        wr(RAW, 0); wr(RAW+4, 64)
    for s, v in enumerate(PRE[:3]):
        rd(E, v, s, 0); rd(E, v, s, 1)
    if fast:
        E(f"""s_and_b32 s18, vcc_hi, 0xffff
        s_cselect_b32 s{S_FLAG}, s{S_FLAG}, 1
        s_lshr_b32 s18, vcc_hi, 16
        s_cselect_b32 s{S_FLAG}, s{S_FLAG}, 1""")
        if job == 0:
            for t in range(6): gather(E, OFF1+t, RAW+4*t)
        cv(Q, D1, range(4)); wr(Q, 512)
        cv(Q, D1, range(4, 8)); wr(Q+4, 576)
    else:
        wr(RAW+8, 512); wr(RAW+12, 576)
    zinit(E, 0)
    rd(E, PRE[3], 3, 0); rd(E, PRE[3], 3, 1)
    if job == 0:
        if fast: cv(INF, DI, range(4))
        else:
            E.wait(r(GI, 4))
            E(f"v_mov_b64 {r(INF,2)}, {r(GI,2)}\nv_mov_b64 {r(INF+2,2)}, {r(GI+2,2)}")
    wr(INF, 1536 - 32 * job)
    if fast:
        cv(P1, D0, range(4)); wr(P1, 1024)
        cv(P1, D0, range(4, 8)); wr(P1+4, 1088)
    else:
        wr(RAW+16, 1024); wr(RAW+20, 1088)

EV = [RAW + k for k in range(21)]
SV = [RAW+21, RAW+22, RAW+23] + [AID + k for k in range(8)] + [SPARE + k for k in range(10)]
def main(E, fast):
    slot = {v: s for s, v in enumerate(PRE)}
    free = list(range(len(PRE), NF))
    todo = sorted([v for v in VERT if v not in PRE], key=lambda v: FIRST[v])
    half = []
    zq = list(range(1, NK))
    zfree = {1: -9, 2: -9}
    ty = "f16" if fast else "bf16"
    def pk(q, ks):
        if not 0 <= q < NS: return
        a, b = (slot_reg(slot[v]) for v in STEPS[q]); P = P0 + 8 * (q % 2)
        for k in ks:
            if fast: E(f"v_pk_mul_f16 v{P+k}, v{a+k}, v{b+k}")
            else:
                E(f"""v_lshlrev_b32 v{T0}, 16, v{a+k}
                v_lshlrev_b32 v{T1}, 16, v{b+k}
                v_mul_f32 v{T0}, v{T0}, v{T1}
                v_and_b32 v{T1}, 0xffff0000, v{a+k}
                v_and_b32 v{T2}, 0xffff0000, v{b+k}
                v_mul_f32 v{T1}, v{T1}, v{T2}
                v_cvt_pk_bf16_f32 v{P+k}, v{T0}, v{T1}""")
    def cvt(q, ks):
        if not 0 <= q < NS: return
        D = D0 + 16 * (q % 2)
        for k in ks:
            if fast: E(f"v_cvt_pk_bf16_f32 v{Q+k}, |v{D+2*k}|, |v{D+2*k+1}|")
            else: E(f"v_cvt_pk_bf16_f32 v{Q+k}, v{D+2*k}, v{D+2*k+1}\nv_pk_max_i16 v{Q+k}, v{Q+k}, 0")
    def shadow(q):
        cand = []
        if zq and zfree.get(zq[0], 99) <= q: cand.append((2 * zq[0] - 0.5, "z"))
        if half: cand.append((FIRST[half[0]] - 1, "h"))
        elif todo and free: cand.append((FIRST[todo[0]] - 1, "f"))
        if not cand: return
        what = min(cand)[1]
        if what == "z": zinit(E, zq.pop(0))
        elif what == "h":
            v = half.pop(0); rd(E, v, slot[v], 1)
        else:
            v = todo.pop(0); slot[v] = free.pop(0); rd(E, v, slot[v], 0); half.append(v)
    def soft(k, part):
        if not 0 <= k < NK: return []
        sd = SD + 4 * (k % 3)
        if not fast:
            return [f"v_add_f32 v{EV[k]}, v{sd}, v{sd+1}", f"v_add_f32 v{SV[k]}, v{sd+2}, v{sd+3}"] if part == 0 else []
        w = SUM if k == 0 else T0
        if part == 0: return [f"v_add_f32 v{T0}, v{sd}, v{sd+1}", f"v_exp_f32 v{w}, v{T0}"]
        if k == 0: return [f"v_mul_f32 v{ACC}, v{w}, v{sd+2}", f"v_fmac_f32 v{ACC}, v{w}, v{sd+3}"]
        return [f"v_add_f32 v{SUM}, v{SUM}, v{w}", f"v_fmac_f32 v{ACC}, v{w}, v{sd+2}", f"v_fmac_f32 v{ACC}, v{w}, v{sd+3}"]
    E.wait(r(slot_reg(0), 16))
    pk(0, range(8))
    for q in range(NS + 1):
        live = q < NS
        P = P0 + 8 * (q % 2); D = D0 + 16 * (q % 2)
        so = soft((q - 3) // 2, 0) if q % 2 else soft((q - 4) // 2, 1)
        if live: E(f"v_mfma_f32_32x32x16_{ty} {r(D,16)}, {r(W,4)}, {r(P,4)}, {r(C,16)}")
        cvt(q - 1, range(6))
        if live: E(f"v_mfma_f32_32x32x16_{ty} {r(D,16)}, {r(W+4,4)}, {r(P+4,4)}, {r(D,16)}")
        nxt = [r(slot_reg(slot[v]), 8) for v in STEPS[q + 1]] if q + 1 < NS else []
        if live: E.wait(r(SD + 4 * ((q // 2) % 3), 4), *nxt)
        if so: E(so.pop(0))
        cvt(q - 1, range(6, 8))
        pk(q + 1, range(4))
        if q % 2 == 0:
            while so: E(so.pop(0))
            if q >= 4: zfree[(q - 4) // 2 + 3] = q
        if live: E(f"v_smfmac_f32_16x16x64_{ty} {r(SD+4*((q//2)%3),4)}, {r(ALS+4*(q%2),4)}, {r(P,8)}, v{IDX}")
        shadow(q)
        pk(q + 1, range(4, 6))
        if q >= 1: E(f"v_smfmac_f32_16x16x64_bf16 {r(SD+4*(((q-1)//2)%3),4)}, {r(AH+4*((q-1)%2),4)}, {r(Q,8)}, v{IDX}")
        shadow(q)
        pk(q + 1, range(6, 8))
        while so: E(so.pop(0))
        if q + 1 < NS:
            for v in STEPS[q + 1]:
                if LAST[v] == q + 1: free.append(slot[v])
    assert not todo and not half and not zq
    for x in soft(NK - 2, 1) + soft(NK - 1, 0) + soft(NK - 1, 1): E(x)
    if not fast:
        E(f"v_max3_f32 v{T0}, v{EV[0]}, v{EV[1]}, v{EV[2]}")
        for k in range(3, NK, 2): E(f"v_max3_f32 v{T0}, v{T0}, v{EV[k]}, v{EV[k+1]}")
        for ctl in ("quad_perm:[1,0,3,2]", "quad_perm:[2,3,0,1]", "row_half_mirror"):
            E(f"v_max_f32_dpp v{T0}, v{T0}, v{T0} {ctl} row_mask:0xf bank_mask:0xf")
        E(f"v_mov_b32 v{T1}, v{T0}\nv_permlane32_swap_b32 v{T0}, v{T1}\nv_max_f32 v{T0}, v{T0}, v{T1}")
        E(f"v_mov_b32 v{SUM}, 0\nv_mov_b32 v{ACC}, 0")
        for k in range(NK):
            E(f"""v_sub_f32 v{T1}, v{EV[k]}, v{T0}
            v_mul_f32 v{T1}, {f32(LOG2E)}, v{T1}
            v_exp_f32 v{T1}, v{T1}
            v_add_f32 v{SUM}, v{SUM}, v{T1}
            v_fmac_f32 v{ACC}, v{T1}, v{SV[k]}""")

def final(E, fast):
    E(f"""v_permlane32_swap_b32 v{ZS}, v{SUM}
    v_permlane32_swap_b32 v{AS}, v{ACC}
    v_add_f32 v{SUM}, v{ZS}, v{SUM}
    v_add_f32 v{ACC}, v{AS}, v{ACC}
    v_lshrrev_b32 v{T0}, 6, v0""")
    fill = [f"v_bfe_u32 v{T1}, v0, 3, 2", f"v_lshl_add_u32 v{T0}, v{T0}, 2, v{T1}", f"v_and_b32 v{T1}, 32, v0"]
    for ctl in ("quad_perm:[1,0,3,2]", "quad_perm:[2,3,0,1]", "row_half_mirror"):
        E(f"v_add_f32_dpp v{SUM}, v{SUM}, v{SUM} {ctl} row_mask:0xf bank_mask:0xf")
        E(f"v_add_f32_dpp v{ACC}, v{ACC}, v{ACC} {ctl} row_mask:0xf bank_mask:0xf")
        E(fill.pop(0))
    E(f"""v_rcp_f32 v{ZS}, v{SUM}
    s_lshl_b32 s18, s2, 6
    v_add3_u32 v{T0}, v{T0}, v{T1}, s18""")
    if fast:
        lo, hi = (127 - 64) << 23, (127 + 100) << 23
        E(f"""v_mul_f32 v{ACC}, {f32(2.0**-PSH)}, v{ACC}
        v_subrev_u32 v{SUM}, {lo}, v{SUM}
        v_mul_f32 v{ACC}, v{ACC}, v{ZS}
        v_cmp_lt_u32 vcc, {hi-lo}, v{SUM}
        s_movk_i32 s18, 0x207
        v_cmp_class_f32_e64 {sp(S_T)}, v{ACC}, s18
        v_lshlrev_b32 v{T0}, 1, v{T0}
        v_cvt_pk_bf16_f32 v{ACC}, v{ACC}, v{ACC}
        s_or_b64 {sp(S_T)}, vcc, {sp(S_T)}
        s_cbranch_scc1 L_slow
        s_cmp_lg_u32 s{S_FLAG}, 0
        s_cbranch_scc1 L_slow""")
    else:
        E(f"""v_mul_f32 v{ACC}, v{ACC}, v{ZS}
        v_lshlrev_b32 v{T0}, 1, v{T0}
        v_cvt_pk_bf16_f32 v{ACC}, v{ACC}, v{ACC}""")
    E(f"""s_mov_b32 exec_lo, 0x01010101
    s_mov_b32 exec_hi, 0x01010101
    global_store_short v{T0}, v{ACC}, s[16:17]""")

def dump_stamps(E, n):
    if OPT["stamps"] == 3:
        E(f"""v_readfirstlane_b32 s18, v0
        s_sub_u32 s19, s{40+2*OPT['amp']}, s40
        s_lshl_b32 s19, s19, 3
        s_add_u32 s19, s19, 3000
        s_cmp_lg_u32 s18, {64*OPT.get('ampw',0)}
        s_cbranch_scc1 L_end
        s_cmp_lg_u32 s2, 100
        s_cbranch_scc1 L_end
        L_spin:
        s_memrealtime s[4:5]
        s_waitcnt lgkmcnt(0)
        s_sub_u32 s4, s4, s40
        s_cmp_lt_u32 s4, s19
        s_cbranch_scc1 L_spin""")
        return
    if OPT["stamps"] == 2:
        E("s_load_dwordx2 s[4:5], s[0:1], 72\ns_mov_b64 exec, 1\nv_mov_b32 v1, 0\ns_waitcnt lgkmcnt(0)")
        for k in range(n):
            E(f"v_mov_b32 v2, s{40+2*k}\nv_not_b32 v3, v2\nglobal_atomic_umax v1, v3, s[4:5] offset:{8*k}\nglobal_atomic_umax v1, v2, s[4:5] offset:{8*k+4}\ns_nop 1")
        return
    E("s_load_dwordx2 s[4:5], s[0:1], 80\ns_mov_b64 exec, 1\nv_lshrrev_b32 v1, 6, v0\ns_lshl_b32 s18, s2, 3\nv_add_u32 v1, s18, v1\nv_lshlrev_b32 v1, 7, v1\ns_waitcnt lgkmcnt(0)")
    for k in range(n):
        E(f"v_mov_b32 v2, s{40+2*k}\nv_mov_b32 v3, s{64+2*k}\nglobal_store_dwordx2 v1, v[2:3], s[4:5] offset:{8*k}\ns_nop 1")
    E("s_getreg_b32 s18, hwreg(HW_REG_HW_ID)\ns_getreg_b32 s19, hwreg(HW_REG_XCC_ID)\nv_mov_b32 v2, s18\nv_mov_b32 v3, s19\nglobal_store_dwordx2 v1, v[2:3], s[4:5] offset:120")

FLEX = ("v_add_f32", "v_exp_f32", "v_fmac_f32", "v_mul_f32")
def size(i):
    if i.kind == "none": return 0
    if i.kind in ("mfma", "ds", "vmem", "smem"): return 8
    if i.kind == "valu" and (i.mn.endswith("_e64") or i.mn.startswith(("v_pk_", "v_cvt_pk"))): return 8
    assert i.mn in FLEX or i.mn in ("s_waitcnt", "s_nop", "s_setprio"), i.text
    return 4
def align8(block):
    out, run = [], []
    def flush():
        if len(run) % 2:
            fl = [k for k, x in enumerate(run) if x.mn in FLEX]
            if fl:
                k = fl[-1] if fl[-1] % 2 == 0 else None
                k = next((j for j in reversed(fl) if j % 2 == 0), None)
                if k is not None: run[k] = I(run[k].text.replace(run[k].mn, run[k].mn + "_e64", 1))
                else: run.append(I("s_nop 0"))
            else: run.append(I("s_nop 0"))
        out.extend(run); run.clear()
    for i in block:
        if size(i) == 4: run.append(i)
        else: flush(); out.append(i)
    flush()
    return out

def program(fast):
    E = Emitter(); sfx = "" if fast else "_x"
    prio = fast and OPT["prio"]
    if fast:
        E("s_cmp_ge_u32 s2, 256\ns_cbranch_scc1 L_end")
        stamp(E, 0)
        if prio: E("s_setprio 2")
    else:
        E("L_slow:\ns_setprio 0")
    u, y4 = loads(E, fast)
    lane_consts(E, u, y4)
    gathers0(E)
    if fast: stamp(E, 1)
    params(E, fast)
    E(f"s_mov_b32 s{S_JOB}, 0")
    if fast: stamp(E, 2)
    conv(E, 0, fast)
    if prio: E("s_setprio 1")
    if fast: stamp(E, 3)
    pre = pad(E.take())
    st = (list(E.vq), list(E.lq))
    main(E, fast)
    body = E.take()
    E(f"s_cmp_lg_u32 s{S_JOB}, 0\ns_cbranch_scc1 L_final{sfx}")
    tail = E.take()
    if fast: stamp(E, 4)
    if prio: E("s_setprio 2")
    E(f"s_mov_b32 s{S_JOB}, 1\nv_mov_b32 v{ZS}, v{SUM}\nv_mov_b32 v{AS}, v{ACC}")
    if not fast:
        for t in range(6): gather(E, OFF1+t, RAW+4*t)
    conv(E, 1, fast)
    if prio: E("s_setprio 0")
    if fast: stamp(E, 5)
    E(f"s_branch L_main{sfx}")
    mid = E.take()
    E.vq, E.lq = [], []
    E(f"L_final{sfx}:")
    if fast: stamp(E, 6)
    final(E, fast)
    if fast and OPT["stamps"]:
        stamp(E, 7); dump_stamps(E, 8)
    if fast: E("L_end:")
    E("s_endpgm")
    fin = E.take()
    mid0 = pad(mid)
    body = pad(body, [pre, mid0])
    if fast and OPT["align"]: body = align8(body)
    body += tail
    mid = pad(mid, [body]); fin = pad(fin, [body])
    check_trace(pre + body + mid + body + fin)
    return pre + [I(".p2align 3"), I(f"L_main{sfx}:")] + body + mid + fin

HEAD = open("cdna_kernels/" + NAME + ".s.ref").read().split("; Override launch")[0]
out = HEAD + f"""; @launch grid=(256,1,1) block=(512,1,1) lds={8*WLDS}
; Generated by gen/gen.py.
.amdgcn_target "amdgcn-amd-amdhsa--gfx950"
.text
.globl {NAME}_kernel
.p2align 8
.type {NAME}_kernel,@function
{NAME}_kernel:
"""
fastp, slowp = program(True), program(False)
for i in fastp + slowp:
    out += (i.text if i.kind == "none" else "    " + i.text) + "\n"
out += f""".section .rodata,"a"
.p2align 6
.amdhsa_kernel {NAME}_kernel
  .amdhsa_next_free_vgpr 256
  .amdhsa_next_free_sgpr 96
  .amdhsa_accum_offset 256
  .amdhsa_group_segment_fixed_size 0
  .amdhsa_kernarg_size 88
  .amdhsa_user_sgpr_count 2
  .amdhsa_user_sgpr_kernarg_segment_ptr 1
  .amdhsa_system_sgpr_workgroup_id_x 1
  .amdhsa_float_denorm_mode_32 3
.end_amdhsa_kernel
"""
open(sys.argv[1], "w").write(out)
nn = sum(int(i.ops[0]) + 1 for i in fastp if i.mn == "s_nop")
print("fast instrs", len(fastp), "nop states", nn, "slow instrs", len(slowp))
```

```python
import sys
NAME = "standalone__factorization_afm__recsys"
def mk(path, pol="", ng=7, who="all", idxpol="", params=0, pf=0, pfpol="", pfn=1):
    st = lambda n: f"s_memrealtime s[{40+2*n}:{41+2*n}]\ns_memtime s[{64+2*n}:{65+2*n}]\ns_waitcnt lgkmcnt(0)\n"
    b = "s_cmp_ge_u32 s2, 256\ns_cbranch_scc1 L_end\n" + st(0)
    b += """s_load_dwordx2 s[4:5], s[0:1], 0
s_load_dwordx2 s[20:21], s[0:1], 8
s_load_dwordx8 s[8:15], s[0:1], 32
v_lshrrev_b32 v10, 4, v0
s_mul_i32 s18, s2, 6656
v_bfe_u32 v11, v0, 2, 2
v_mul_u32_u24 v10, 104, v10
s_movk_i32 s19, 416
v_add_u32 v10, s18, v10
v_and_b32 v12, 8, v0
v_mad_u32_u24 v13, v11, 24, v10
v_and_b32 v14, 4, v0
v_mad_u32_u24 v15, v12, s19, v10
v_add_u32 v15, v15, v14
v_and_b32 v16, 3, v0
v_lshlrev_b32 v16, 4, v16
v_and_b32 v17, 63, v0
v_lshlrev_b32 v17, 4, v17
v_readfirstlane_b32 s30, v0
s_mov_b32 s22, 6400000
s_mov_b32 s23, 0x00020000
s_waitcnt lgkmcnt(0)
""" + st(1)
    if pf == 1:
        b += f"""s_cmp_lt_u32 s30, 256
s_cbranch_scc1 L_nopf
v_and_b32 v18, 255, v0
s_mul_i32 s18, s2, 196
v_min_u32 v18, 195, v18
v_add_lshl_u32 v18, v18, s18, 7
buffer_load_dword v19, v18, s[20:23], 0 offen {pfpol}
L_nopf:
"""
    if pf == 2:
        b += f"""s_mul_i32 s18, s2, 392
v_min_u32 v18, 391, v0
v_add_lshl_u32 v18, v18, s18, 6
buffer_load_dword v19, v18, s[20:23], 0 offen {pfpol}
"""
    if pf == 3:
        b += f"""s_cmp_lt_u32 s30, 256
s_cbranch_scc1 L_nopf
v_and_b32 v18, 255, v0
s_lshr_b32 s18, s2, 3
s_and_b32 s19, s2, {8//pfn-1}
s_lshl_b32 s19, s19, 5
s_add_u32 s18, s18, s19
s_mul_i32 s18, s18, {196*pfn}
v_min_u32 v18, 195, v18
v_add_lshl_u32 v18, v18, s18, 7
"""
        for k in range(pfn): b += f"s_mov_b32 s19, {196*128*k}\nbuffer_load_dword v19, v18, s[20:23], s19 offen {pfpol}\n"
        b += "L_nopf:\n"
    b += f"""global_load_dwordx4 v[20:23], v13, s[4:5] {idxpol}
global_load_dword v26, v15, s[4:5] offset:96 {idxpol}
global_load_dwordx2 v[24:25], v13, s[4:5] offset:16 {idxpol}
global_load_dwordx4 v[28:31], v13, s[4:5] offset:3328 {idxpol}
global_load_dwordx2 v[32:33], v13, s[4:5] offset:3344 {idxpol}
"""
    for k in range(params): b += f"global_load_dwordx4 v[{100+4*k}:{103+4*k}], v17, s[8:9] offset:{1024*(k%2)}\n"
    b += f"s_waitcnt vmcnt({params})\n" + st(2)
    if who == "old": b += "s_cmp_ge_u32 s30, 256\ns_cbranch_scc1 L_skip\n"
    regs = [20, 21, 22, 23, 26, 24, 25, 28, 29, 30, 31, 32, 33][:ng]
    for t, i in enumerate(regs):
        b += f"v_lshl_add_u32 v{i}, v{i}, 6, v16\nbuffer_load_dwordx4 v[{40+4*t}:{43+4*t}], v{i}, s[20:23], 0 offen {pol}\n"
    b += "L_skip:\n" + st(3) + f"s_waitcnt vmcnt({max(ng-1,0)})\n" + st(4) + f"s_waitcnt vmcnt({max(ng-2,0)})\n" + st(5) + f"s_waitcnt vmcnt({max(ng-4,0)})\n" + st(6) + "s_waitcnt vmcnt(0)\n" + st(7)
    b += "s_load_dwordx2 s[4:5], s[0:1], 80\ns_mov_b64 exec, 1\nv_lshrrev_b32 v1, 6, v0\ns_lshl_b32 s18, s2, 3\nv_add_u32 v1, s18, v1\nv_lshlrev_b32 v1, 7, v1\ns_waitcnt lgkmcnt(0)\n"
    for k in range(8): b += f"v_mov_b32 v2, s{40+2*k}\nv_mov_b32 v3, s{64+2*k}\nglobal_store_dwordx2 v1, v[2:3], s[4:5] offset:{8*k}\ns_nop 1\n"
    b += "s_getreg_b32 s18, hwreg(HW_REG_HW_ID)\ns_getreg_b32 s19, hwreg(HW_REG_XCC_ID)\nv_mov_b32 v2, s18\nv_mov_b32 v3, s19\nglobal_store_dwordx2 v1, v[2:3], s[4:5] offset:120\nL_end:\ns_endpgm\n"
    open(path, "w").write(f"""; @launch grid=(256,1,1) block=(512,1,1) lds=66560
.amdgcn_target "amdgcn-amd-amdhsa--gfx950"
.text
.globl {NAME}_kernel
.p2align 8
.type {NAME}_kernel,@function
{NAME}_kernel:
{b}.section .rodata,"a"
.p2align 6
.amdhsa_kernel {NAME}_kernel
  .amdhsa_next_free_vgpr 256
  .amdhsa_next_free_sgpr 96
  .amdhsa_accum_offset 256
  .amdhsa_group_segment_fixed_size 0
  .amdhsa_kernarg_size 88
  .amdhsa_user_sgpr_count 2
  .amdhsa_user_sgpr_kernarg_segment_ptr 1
  .amdhsa_system_sgpr_workgroup_id_x 1
.end_amdhsa_kernel
""")
if __name__ == "__main__":
    import os, ctypes, numpy as np
    cases = [("old7", dict(who="old")), ("old7_pf1", dict(who="old", pf=1)), ("old7_pf2", dict(who="old", pf=2)), ("old7_pf1nt", dict(who="old", pf=1, pfpol="nt")),
             ("old7_pf3x2", dict(who="old", pf=3, pfn=2)), ("old7_pf3x4", dict(who="old", pf=3, pfn=4)),
             ("old7_idxnt", dict(who="old", idxpol="nt")), ("old7_pf1_idxnt", dict(who="old", pf=1, idxpol="nt")), ("old7_pf1_ntnt", dict(who="old", pf=1, idxpol="nt", pol="nt")),
             ("all7_pf1", dict(pf=1)), ("all13_pf1", dict(pf=1, ng=13)), ("old4_pf1", dict(who="old", pf=1, ng=4)), ("old2_pf1", dict(who="old", pf=1, ng=2)), ("old4", dict(who="old", ng=4))]
    for n, kw in cases: mk(f"g_{n}.s", **kw)
    if os.path.exists("/dev/kfd"):
        from run import *
        from run import _hip
        inp = inputs(0); c = Ctx(inp); flush = DeviceBuffer(512 << 20)
        for n, kw in cases:
            k = load(f"g_{n}.s")
            for label, fl in (("cold", flush),):
                res = []
                for rep in range(8):
                    if fl is not None:
                        _hip.hipMemset(ctypes.c_void_p(fl.ptr), 3, fl.nbytes); _hip.hipDeviceSynchronize()
                    launch(k, c); _hip.hipDeviceSynchronize()
                    w = c.ws.to_numpy(np.uint32, (2048, 32)); rt = w[:, 0:16:2].astype(np.int64)
                    d = (rt - rt[:, :1]) / 100.0
                    old = (np.arange(2048) % 8) < 4
                    res.append(np.concatenate([np.median(d[old], axis=0)[1:], [d[old][:, 7].max()], np.median(d[~old], axis=0)[[2, 3, 7]], [d[:, 7].max()]]))
                m = np.median(np.array(res[1:]), axis=0)
                print(f"{n:14s} {label}: old karg {m[0]:.2f} idx {m[1]:.2f} issued {m[2]:.2f} g1 {m[3]:.2f} g2 {m[4]:.2f} g4 {m[5]:.2f} all {m[6]:.2f} (max {m[7]:.2f}) | young idx {m[8]:.2f} issued {m[9]:.2f} all {m[10]:.2f} | max {m[11]:.2f}", flush=True)
            k[0].unload()
```

```python
import sys, struct, math
from asmlib import *

NAME = "standalone__factorization_afm__recsys"
OPT = dict(stamps=0, force_slow=0, align=1, prio=1, nt=1, cq=7, clate=0, jq=14, stpol=0)
for a in sys.argv[2:]:
    k, v = a.split("="); OPT[k] = int(v)

def f32(x): return "0x%08x" % struct.unpack("<I", struct.pack("<f", x))[0]
def r(b, n=1): return f"v{b}" if n == 1 else f"v[{b}:{b+n-1}]"

IDX, R0, R1, R3, R4, RT2, RT3, RB, RU, RV, RZ, RM, RW = range(1, 14)
SUM, ACC, T0, T1, ZS, AS, CH16, T2 = range(14, 22)
OFF1, INF, C, D0, W, ALS, AH, AID, P0, Q, SD, RAW, F = 22, 28, 32, 48, 80, 88, 96, 104, 112, 128, 136, 148, 172
NF = 9
SPARE = 244
CH, WLDS = 2080, 8320
PAR = 8 * WLDS
LOG2E = math.log2(math.e)
PSH = 6
S_MPAR, S_MT, S_MB, S_M0, S_M1, S_FLAG, S_JOB, S_T, S_W = 24, 26, 28, 30, 32, 34, 35, 36, 38
def sp(b): return f"s[{b}:{b+1}]"

VERT = {}
for nm, o in (("A", 0), ("B", 1), ("C", 2)):
    for x, reg in ((0, R0), (1, R1), (3, R3)):
        VERT[f"{nm}{x}"] = (reg, 512 * o, (lambda c, o=o, x=x: (o, (x + c) % 8)))
VERT["I1"] = (RB, 1536, lambda c: (3, 0))
VERT["I2"] = (RB, 1552, lambda c: (3, 1))
VERT["T1"] = (R4, 0, lambda c: (0, (c + 4) % 8))
VERT["T2"] = (RT2, 512, lambda c: (2 if c >= 4 else 1, (c + 4) % 8))
VERT["T3"] = (RT3, 1024, lambda c: (1 if c >= 4 else 2, (c + 4) % 8))
VERT["U"] = (RU, 0, lambda c: (3, 0) if c >= 4 else (0, c))
VERT["V"] = (RV, 0, lambda c: (3, 1) if c >= 4 else (0, c + 4))
STEPS = """A0A1 A0A3 A1A3 A0B0 A1B0 A3B0 A0B1 A3B1 B0B1 A0B3 A1B3 B0B3 B1B3
A0C3 A1C3 B0C3 B1C3 A1C0 B1C0 C0C3 A0C0 B0C0 A3C0 B3C0 C1C3 A3C1 B3C1 A0C1 B0C1 C0C1
I1A0 I1B0 I1C0 I2A0 I2B0 I2C0 T1B0 T1C0 T2B0 T3C0""".split()
STEPS = [(s[:2], s[2:]) for s in STEPS] + [("U", "V")]
NS = len(STEPS)
seen = set()
for q, (a, b) in enumerate(STEPS):
    for c in range(8):
        if q == NS - 1 and c >= 5: continue
        e = frozenset((VERT[a][2](c), VERT[b][2](c)))
        assert len(e) == 2 and e not in seen
        seen.add(e)
assert len(seen) == 325 and NS == 41
FIRST = {}; LAST = {}
for q, ab in enumerate(STEPS):
    for v in ab:
        FIRST.setdefault(v, q); LAST[v] = q
NK = (NS + 1) // 2

def stamp(E, n):
    if OPT["stamps"]:
        E(f"s_memrealtime s[{40+2*n}:{41+2*n}]")
        E(f"s_memtime s[{64+2*n}:{65+2*n}]")
        E("s_waitcnt lgkmcnt(0)")

I0 = P0
GI = INF
W32, BB, W16, HB, PB, XX, YY, TM = F, F + 8, F + 16, F + 24, F + 28, F + 32, F + 36, F + 40

U_, A_, VA, VB, X8, Y4, H16, K16, AW, AW16 = range(TM, TM + 10)
def head(E, first):
    if first:
        E(f"""s_load_dwordx2 s[4:5], s[0:1], 0
        s_load_dwordx2 s[20:21], s[0:1], 8
        s_load_dwordx8 s[8:15], s[0:1], 32
        s_load_dwordx2 s[16:17], s[0:1], 64
        v_readfirstlane_b32 s{S_W}, v0""")
    E(f"""v_lshrrev_b32 v{A_}, 4, v0
    s_mul_i32 s18, s2, 6656
    v_bfe_u32 v{U_}, v0, 2, 2
    v_mul_u32_u24 v{A_}, 104, v{A_}
    s_movk_i32 s19, 416
    v_add_u32 v{A_}, s18, v{A_}
    v_and_b32 v{X8}, 8, v0
    v_mad_u32_u24 v{VA}, v{U_}, 24, v{A_}
    v_and_b32 v{Y4}, 4, v0
    v_mad_u32_u24 v{VB}, v{X8}, s19, v{A_}
    v_add_u32 v{VB}, v{VB}, v{Y4}""")
    if first:
        E("""s_mov_b32 s22, 6400000
        s_mov_b32 s23, 0x00020000""")

def idx_loads(E, job):
    nt = " nt" if OPT["nt"] else ""
    if job == 0:
        E(f"""global_load_dwordx4 {r(I0,4)}, v{VA}, s[4:5]{nt}
        global_load_dwordx2 {r(I0+4,2)}, v{VA}, s[4:5] offset:16{nt}
        global_load_dword v{I0+6}, v{VB}, s[4:5] offset:96{nt}""")
    else:
        E(f"""global_load_dwordx4 {r(OFF1,4)}, v{VA}, s[4:5] offset:3328{nt}
        global_load_dwordx2 {r(OFF1+4,2)}, v{VA}, s[4:5] offset:3344{nt}""")

def param_loads(E, fast):
    E(f"""v_lshrrev_b32 v{H16}, 1, v0
    v_and_b32 v{AW}, 19, v0
    v_and_b32 v{H16}, 16, v{H16}
    v_and_b32 v{K16}, 48, v0
    v_lshl_add_u32 v{AW}, v{AW}, 6, v{H16}
    v_and_b32 v{AW16}, 14, v0
    v_lshl_add_u32 v{AW}, v{Y4}, 7, v{AW}
    v_lshl_add_u32 v{AW16}, v{AW16}, 7, v{K16}
    v_lshl_add_u32 v{AW}, v{X8}, 5, v{AW}
    v_and_b32 v{A_}, 1, v0
    v_lshl_add_u32 v{AW16}, v{A_}, 6, v{AW16}""")
    if fast: E("s_waitcnt lgkmcnt(0)")
    E(f"""global_load_dwordx4 {r(W32,4)}, v{AW}, s[8:9]
    global_load_dwordx4 {r(W32+4,4)}, v{AW}, s[8:9] offset:32
    global_load_dwordx4 {r(BB,4)}, v{H16}, s[10:11]
    global_load_dwordx4 {r(BB+4,4)}, v{H16}, s[10:11] offset:32
    global_load_dwordx4 {r(HB,4)}, v{K16}, s[12:13]
    global_load_dwordx4 {r(PB,4)}, v{K16}, s[14:15]""")
    if fast:
        E(f"""global_load_dwordx4 {r(W16,4)}, v{AW16}, s[8:9]
        global_load_dwordx4 {r(W16+4,4)}, v{AW16}, s[8:9] offset:128""")

def lane_consts(E, u, y4):
    t, l16, one = TM + 10, TM + 11, TM + 12
    z = D0
    E(f"""v_lshrrev_b32 v{t}, 6, v0
    s_movk_i32 s18, {CH}
    v_mul_u32_u24 v{RZ}, {WLDS}, v{t}
    v_and_b32 v{t}, 3, v0
    v_lshlrev_b32 v{CH16}, 4, v{t}
    v_mad_u32_u24 v{RW}, v{t}, s18, v{RZ}
    v_bfe_u32 v{t}, v0, 4, 2
    v_lshl_add_u32 v{RW}, v{u}, 4, v{RW}
    v_lshl_add_u32 v{RW}, v{t}, 7, v{RW}
    v_bfe_u32 v{t}, v0, 5, 1
    v_mad_u32_u24 v{RB}, v{t}, s18, v{RZ}
    v_and_b32 v{t}, 24, v0
    v_and_b32 v{l16}, 7, v0
    v_lshl_add_u32 v{RB}, v{t}, 4, v{RB}
    v_lshl_add_u32 v{R0}, v{l16}, 4, v{RB}
    v_xor_b32 v{t}, 4, v{l16}
    v_lshl_add_u32 v{R4}, v{t}, 4, v{RB}
    v_add_u32 v{t}, 1, v{l16}
    v_and_b32 v{t}, 7, v{t}
    v_lshl_add_u32 v{R1}, v{t}, 4, v{RB}
    v_add_u32 v{t}, 3, v{l16}
    v_and_b32 v{t}, 7, v{t}
    v_lshl_add_u32 v{R3}, v{t}, 4, v{RB}
    v_lshlrev_b32 v{t}, 7, v{y4}
    s_mov_b32 s{S_MB}, 0xf0f0f0f0
    v_add_u32 v{RT2}, v{R4}, v{t}
    s_mov_b32 s{S_MB+1}, s{S_MB}
    v_sub_u32 v{RT3}, v{R4}, v{t}
    v_add_u32 v{t}, 1536, v{RB}
    s_mov_b32 s{S_M0}, 0xe0e0e0e0
    v_cndmask_b32_e64 v{RU}, v{R0}, v{t}, {sp(S_MB)}
    v_add_u32 v{t}, 16, v{t}
    s_mov_b32 s{S_M0+1}, -1
    v_cndmask_b32_e64 v{RV}, v{R4}, v{t}, {sp(S_MB)}
    v_add_u32 v{t}, 16, v{RZ}
    v_mov_b32 v{z}, 0xff800000
    v_cndmask_b32_e64 v{RM}, v{RZ}, v{t}, {sp(S_M0)}
    v_cndmask_b32_e64 v{z}, 0, v{z}, {sp(S_M0)}
    v_mov_b32 v{z+1}, 0
    v_mov_b64 {r(z+2,2)}, 0
    s_mov_b32 s{S_MPAR}, 0xaaaaaaaa
    ds_write_b128 v{RM}, {r(z,4)} offset:2048
    s_mov_b32 s{S_MPAR+1}, s{S_MPAR}
    v_mov_b32 v{t}, 0x4444
    v_mov_b32 v{IDX}, 0xeeee
    s_mov_b32 s{S_MT}, 0xcccccccc
    v_cndmask_b32_e64 v{IDX}, v{t}, v{IDX}, {sp(S_MPAR)}
    v_mov_b32 v{t}, 0x3f80
    s_mov_b32 s{S_MT+1}, s{S_MT}
    v_cndmask_b32_e64 v{one}, v{t}, 1.0, {sp(S_MPAR)}
    s_mov_b32 s{S_M0}, 3
    s_mov_b32 s{S_M0+1}, 48""")
    for R in range(8):
        sh = 8 * (R // 2) + 2 * (R % 2)
        m = S_M0
        if sh:
            m = S_M1 if R % 2 else S_T
            E(f"s_lshl_b64 {sp(m)}, {sp(S_M0)}, {sh}")
        E(f"v_cndmask_b32_e64 v{AID+R}, 0, v{one}, {sp(m)}")

def gather(E, idx, dst):
    E(f"buffer_load_dwordx4 {r(dst,4)}, v{idx}, s[20:23], 0 offen")

def gathers0(E, which):
    for t in which:
        i, d = (I0 + t, RAW + 4 * t) if t < 6 else (I0 + 6, GI)
        E.wait(f"v{i}")
        E(f"v_lshl_add_u32 v{i}, v{i}, 6, v{CH16}")
        gather(E, i, d)
def gathers1(E):
    E.wait(r(OFF1, 6))
    for t in range(6):
        E(f"v_lshl_add_u32 v{OFF1+t}, v{OFF1+t}, 6, v{CH16}")
        gather(E, OFF1 + t, RAW + 4 * t)
PARQ = [W, W+4, C, C+4, C+8, C+12, ALS, ALS+4, AH, AH+4]

def params(E, fast):
    D1 = D0 + 16
    E.wait(r(W32, 8))
    E(f"v_mfma_f32_32x32x16_bf16 {r(D1,16)}, {r(W32,4)}, {r(AID,4)}, 0")
    E(f"v_mfma_f32_32x32x16_bf16 {r(D1,16)}, {r(W32+4,4)}, {r(AID+4,4)}, {r(D1,16)}")
    E.wait(r(BB, 8))
    E(f"v_mfma_f32_32x32x16_bf16 {r(C,16)}, {r(AID,4)}, {r(BB,4)}, 0")
    E(f"v_mfma_f32_32x32x16_bf16 {r(C,16)}, {r(AID+4,4)}, {r(BB+4,4)}, {r(C,16)}")
    E.wait(r(HB, 8))
    vh, vp, pf, kk = TM + 14, TM + 16, TM + 18, TM + 22
    for j in range(2):
        E(f"v_cndmask_b32_e64 v{vh+j}, v{HB+2*j}, v{HB+2*j+1}, {sp(S_MPAR)}")
        E(f"v_cndmask_b32_e64 v{vp+j}, v{PB+2*j}, v{PB+2*j+1}, {sp(S_MPAR)}")
    if fast:
        E.wait(r(W16, 8))
        E(f"v_mfma_f32_16x16x32_bf16 {r(XX,4)}, {r(W16,4)}, {r(HB,4)}, 0")
        E(f"v_mfma_f32_16x16x32_bf16 {r(YY,4)}, {r(W16+4,4)}, {r(HB,4)}, 0")
    E(f"s_mov_b32 s{S_M0}, 0x00030003\ns_mov_b32 s{S_M0+1}, s{S_M0}")
    for g in range(4):
        m = S_M0
        if g:
            m = S_M1 if g % 2 else S_T
            E(f"s_lshl_b64 {sp(m)}, {sp(S_M0)}, {4*g}")
        for j in range(2):
            E(f"v_cndmask_b32_e64 v{AH+2*g+j}, 0, v{vh+j}, {sp(m)}")
    if fast:
        E(f"s_mov_b32 s18, {f32(LOG2E/2)}")
        E(f"s_mov_b32 s19, {f32(2.0**-7)}")
        for j in range(2):
            E(f"v_lshlrev_b32 v{pf+2*j}, 16, v{vp+j}")
            E(f"v_and_b32 v{pf+2*j+1}, 0xffff0000, v{vp+j}")
        E(f"v_mov_b32 v{kk}, s18")
        E(f"v_mov_b32 v{kk+1}, {f32(2.0**PSH)}")
        E(f"v_cmp_le_f32_e64 vcc, s19, |v{D1}|")
        E(f"v_cndmask_b32_e64 v{kk+1}, v{kk}, v{kk+1}, {sp(S_MT)}")
        for k in range(8):
            E(f"v_mul_f32 v{D1+2*k}, v{kk}, v{D1+2*k}")
            E(f"v_mul_f32 v{D1+2*k+1}, v{kk}, v{D1+2*k+1}")
            if k == 0:
                E(f"s_cmp_eq_u64 vcc, 0\ns_cselect_b32 s18, -1, s18")
            E(f"v_cvt_pk_f16_f32 v{W+k}, v{D1+2*k}, v{D1+2*k+1}")
        for k in range(4):
            E(f"v_cndmask_b32_e64 v{XX+k}, v{XX+k}, v{YY+k}, {sp(S_MPAR)}")
            E(f"v_cndmask_b32_e64 v{XX+k}, v{XX+k}, v{pf+k}, {sp(S_MT)}")
            E(f"v_mul_f32 v{XX+k}, v{kk+1}, v{XX+k}")
        E(f"v_cmp_le_f32_e64 vcc, s19, |v{XX}|")
        for j in range(2):
            E(f"v_cvt_pk_f16_f32 v{vp+j}, v{XX+2*j}, v{XX+2*j+1}")
        E(f"""s_and_b64 {sp(S_T)}, vcc, {sp(S_MT)}
        s_cselect_b32 s18, s18, -1
        s_andn2_b64 {sp(S_T)}, vcc, {sp(S_MT)}
        s_cselect_b32 s18, s18, -1""")
        for k in range(16):
            E(f"v_mul_f32 v{C+k}, s18, v{C+k}")
    else:
        for k in range(8):
            E(f"v_cvt_pk_bf16_f32 v{W+k}, v{D1+2*k}, v{D1+2*k+1}")
    E(f"s_mov_b32 s{S_M0}, {'0x000f000f' if fast else '0x000c000c'}\ns_mov_b32 s{S_M0+1}, s{S_M0}")
    for g in range(4):
        m = S_M0
        if g:
            m = S_M1 if g % 2 else S_T
            E(f"s_lshl_b64 {sp(m)}, {sp(S_M0)}, {4*g}")
        for j in range(2):
            E(f"v_cndmask_b32_e64 v{ALS+2*g+j}, 0, v{vp+j}, {sp(m)}")

PRE = ["A0", "A1", "A3", "B0"]
def slot_reg(s): return F + 8 * s
def rd(E, v, s, t):
    reg, off, _ = VERT[v]
    E(f"ds_read_b128 {r(slot_reg(s)+4*t,4)}, v{reg} offset:{off + 2*CH*t}")
def zinit(E, k):
    E(f"ds_read_b128 {r(SD+4*(k%3),4)}, v{RM if k == NK-1 else RZ} offset:2048")

def mm(E, d, g, hi):
    E.wait(r(g, 4))
    E(f"v_mfma_f32_32x32x16_bf16 {r(d,16)}, {r(AID+4*hi,4)}, {r(g,4)}, {r(d,16) if hi else 0}")
def cv(dst, d, ks):
    return [f"v_cvt_pk_f16_f32 v{dst+k}, v{d+2*k}, v{d+2*k+1}" for k in ks]
def wr(E, src, off):
    E.wait(r(src, 4))
    E(f"ds_write_b128 v{RW}, {r(src,4)} offset:{off}")

def conv(E, job, fast):
    D1 = D0 + 16; P1 = P0 + 8
    if fast:
        if job: wr(E, INF, 1536 - 32)
        mm(E, D0, RAW, 0); mm(E, D0, RAW+4, 1)
        if job == 0 and OPT["clate"]:
            gathers0(E, (4, 5, 6)); idx_loads(E, 1)
        mm(E, D1, RAW+8, 0); mm(E, D1, RAW+12, 1)
        E(f"s_mov_b32 s19, {f32(0.125)}")
        E(f"v_cmp_le_f32_e64 vcc, s19, |v{D0}|")
        E("\n".join(cv(P1, D0, range(4)))); wr(E, P1, 0)
        E("\n".join(cv(P1, D0, range(4, 8)))); wr(E, P1+4, 64)
    else:
        wr(E, RAW, 0); wr(E, RAW+4, 64)
    for s, v in enumerate(PRE[:3]):
        rd(E, v, s, 0); rd(E, v, s, 1)
    zinit(E, 0)
    if fast:
        E("\n".join(cv(Q, D1, range(4)))); wr(E, Q, 512)
        E(f"""s_and_b32 s18, vcc_lo, 0xffff
        s_cselect_b32 s{S_FLAG}, s{S_FLAG}, 1
        s_lshr_b32 s18, vcc_lo, 16
        s_cselect_b32 s{S_FLAG}, s{S_FLAG}, 1""")
        E("\n".join(cv(Q, D1, range(4, 8)))); wr(E, Q+4, 576)
        E(f"""s_and_b32 s18, vcc_hi, 0xffff
        s_cselect_b32 s{S_FLAG}, s{S_FLAG}, 1
        s_lshr_b32 s18, vcc_hi, 16
        s_cselect_b32 s{S_FLAG}, s{S_FLAG}, 1""")
    else:
        wr(E, RAW+8, 512); wr(E, RAW+12, 576)
        wr(E, INF, 1536 - 32 * job)
        wr(E, RAW+16, 1024); wr(E, RAW+20, 1088)
    rd(E, PRE[3], 3, 0); rd(E, PRE[3], 3, 1)
    E(f"s_cmp_lg_u32 s{S_JOB}, 0")

EV = [RAW + k for k in range(21)]
SV = [RAW+21, RAW+22, RAW+23] + [AID + k for k in range(8)] + [SPARE + k for k in range(10)]
def main(E, fast):
    slot = {v: s for s, v in enumerate(PRE)}
    free = list(range(len(PRE), NF))
    todo = sorted([v for v in VERT if v not in PRE], key=lambda v: FIRST[v])
    half = []
    zq = list(range(1, NK))
    zfree = {1: -9, 2: -9}
    ty = "f16" if fast else "bf16"
    def pk(q, ks):
        if not 0 <= q < NS: return []
        a, b = (slot_reg(slot[v]) for v in STEPS[q]); P = P0 + 8 * (q % 2)
        if fast: return [f"v_pk_mul_f16 v{P+k}, v{a+k}, v{b+k}" for k in ks]
        return [f"""v_lshlrev_b32 v{T0}, 16, v{a+k}
                v_lshlrev_b32 v{T1}, 16, v{b+k}
                v_mul_f32 v{T0}, v{T0}, v{T1}
                v_and_b32 v{T1}, 0xffff0000, v{a+k}
                v_and_b32 v{T2}, 0xffff0000, v{b+k}
                v_mul_f32 v{T1}, v{T1}, v{T2}
                v_cvt_pk_bf16_f32 v{P+k}, v{T0}, v{T1}""" for k in ks]
    def cvt(q, ks):
        if not 0 <= q < NS: return []
        D = D0 + 16 * (q % 2)
        if fast: return [f"v_cvt_pk_bf16_f32 v{Q+k}, |v{D+2*k}|, |v{D+2*k+1}|" for k in ks]
        return [f"v_cvt_pk_bf16_f32 v{Q+k}, v{D+2*k}, v{D+2*k+1}\nv_pk_max_i16 v{Q+k}, v{Q+k}, 0" for k in ks]
    CQ, JQ = OPT["cq"], OPT["jq"]
    DC = slot_reg(NF - 2)
    ready = {v: (CQ + 3 if v[0] == "C" or v in ("T2", "T3") else JQ + 1 if v[0] in "IUV" else -9) if fast else -9 for v in VERT}
    held = [NF - 2, NF - 1] if fast else []
    free = [x for x in free if x not in held]
    wq = []
    def shadow(q):
        shadow_read(q)
        if wq: wr(E, *wq.pop(0))
    def shadow_read(q):
        cand = []
        if zq and zfree.get(zq[0], 99) <= q: cand.append((2 * zq[0] - 0.5, "z"))
        if half: cand.append((FIRST[half[0]] - 1, "h"))
        elif todo and free and ready[todo[0]] <= q: cand.append((FIRST[todo[0]] - 1, "f"))
        if not cand: return
        what = min(cand)[1]
        if what == "z": zinit(E, zq.pop(0))
        elif what == "h":
            v = half.pop(0); rd(E, v, slot[v], 1)
        else:
            v = todo.pop(0); slot[v] = free.pop(0); rd(E, v, slot[v], 0); half.append(v)
    def soft(k, part):
        if not 0 <= k < NK: return []
        sd = SD + 4 * (k % 3)
        if not fast:
            return [f"v_add_f32 v{EV[k]}, v{sd}, v{sd+1}", f"v_add_f32 v{SV[k]}, v{sd+2}, v{sd+3}"] if part == 0 else []
        w = SUM if k == 0 else T0
        if part == 0: return [f"v_add_f32 v{T0}, v{sd}, v{sd+1}", f"v_exp_f32 v{w}, v{T0}"]
        if k == 0: return [f"v_mul_f32 v{ACC}, v{w}, v{sd+2}", f"v_fmac_f32 v{ACC}, v{w}, v{sd+3}"]
        return [f"v_add_f32 v{SUM}, v{SUM}, v{w}", f"v_fmac_f32 v{ACC}, v{w}, v{sd+2}", f"v_fmac_f32 v{ACC}, v{w}, v{sd+3}"]
    def out(L):
        for x in L: E(x)
    E.wait(r(slot_reg(0), 16))
    out(pk(0, range(8)))
    segs = []
    for q in range(NS + 1):
        live = q < NS
        P = P0 + 8 * (q % 2); D = D0 + 16 * (q % 2)
        so = soft((q - 3) // 2, 0) if q % 2 else soft((q - 4) // 2, 1)
        extra = fast and q in (CQ, CQ + 1)
        if live: E(f"v_mfma_f32_32x32x16_{ty} {r(D,16)}, {r(W,4)}, {r(P,4)}, {r(C,16)}")
        out(cvt(q - 1, range(6)))
        if live: E(f"v_mfma_f32_32x32x16_{ty} {r(D,16)}, {r(W+4,4)}, {r(P+4,4)}, {r(D,16)}")
        nxt = [r(slot_reg(slot[v]), 8) for v in STEPS[q + 1]] if q + 1 < NS else []
        assert not live or q // 2 not in zq
        assert q + 1 >= NS or not set(STEPS[q + 1]) & set(half)
        if live: E.wait(r(SD + 4 * ((q // 2) % 3), 4), *nxt)
        if so: E(so.pop(0))
        out(cvt(q - 1, range(6, 8)))
        p = pk(q + 1, range(8))
        n1, n2 = (3, 4) if extra else (4, 6)
        out(p[:n1])
        if fast and q == CQ + 2:
            out(cv(RAW, DC, range(4))); wq.append((RAW, 1024))
        if q % 2 == 0 and not extra:
            out(so); so = []
        if q % 2 == 0 and q >= 4: zfree[(q - 4) // 2 + 3] = q + extra
        if live: E(f"v_smfmac_f32_16x16x64_{ty} {r(SD+4*((q//2)%3),4)}, {r(ALS+4*(q%2),4)}, {r(P,8)}, v{IDX}")
        shadow(q)
        out(p[n1:n2])
        if fast and q == CQ + 2:
            out(cv(RAW, DC, range(4, 8))); wq.append((RAW + 4, 1088))
            free += held
        if q >= 1: E(f"v_smfmac_f32_16x16x64_bf16 {r(SD+4*(((q-1)//2)%3),4)}, {r(AH+4*((q-1)%2),4)}, {r(Q,8)}, v{IDX}")
        if extra:
            if q == CQ: E("s_waitcnt vmcnt(0)")
            else: shadow(q)
            out(p[n2:n2+1]); n2 += 1
            mm(E, DC, RAW + 16 + 4 * (q - CQ), q - CQ)
        else: shadow(q)
        out(p[n2:]); out(so)
        if fast and q == JQ:
            E("s_cbranch_scc1 L_skip")
            segs.append(E.take()); lq = list(E.lq)
            mm(E, RAW, GI, 0)
            for t in range(6): E(f"v_lshl_add_u32 v{OFF1+t}, v{OFF1+t}, 6, v{CH16}")
            for t in (4, 5): gather(E, OFF1 + t, RAW + 4 * t)
            out(cv(INF, RAW, range(4)))
            for t in range(4): gather(E, OFF1 + t, RAW + 4 * t)
            wr(E, INF, 1536)
            segs.append(E.take()); E.lq = lq
            E("L_skip:")
        if q + 1 < NS:
            for v in STEPS[q + 1]:
                if LAST[v] == q + 1: free.append(slot[v])
    assert not todo and not half and not zq
    for x in soft(NK - 2, 1) + soft(NK - 1, 0) + soft(NK - 1, 1): E(x)
    if not fast:
        E(f"v_max3_f32 v{T0}, v{EV[0]}, v{EV[1]}, v{EV[2]}")
        for k in range(3, NK, 2): E(f"v_max3_f32 v{T0}, v{T0}, v{EV[k]}, v{EV[k+1]}")
        for ctl in ("quad_perm:[1,0,3,2]", "quad_perm:[2,3,0,1]", "row_half_mirror"):
            E(f"v_max_f32_dpp v{T0}, v{T0}, v{T0} {ctl} row_mask:0xf bank_mask:0xf")
        E(f"v_mov_b32 v{T1}, v{T0}\nv_permlane32_swap_b32 v{T0}, v{T1}\nv_max_f32 v{T0}, v{T0}, v{T1}")
        E(f"v_mov_b32 v{SUM}, 0\nv_mov_b32 v{ACC}, 0")
        for k in range(NK):
            E(f"""v_sub_f32 v{T1}, v{EV[k]}, v{T0}
            v_mul_f32 v{T1}, {f32(LOG2E)}, v{T1}
            v_exp_f32 v{T1}, v{T1}
            v_add_f32 v{SUM}, v{SUM}, v{T1}
            v_fmac_f32 v{ACC}, v{T1}, v{SV[k]}""")
    return segs + [E.take()]

def final(E, fast):
    E(f"""v_permlane32_swap_b32 v{ZS}, v{SUM}
    v_permlane32_swap_b32 v{AS}, v{ACC}
    v_add_f32 v{SUM}, v{ZS}, v{SUM}
    v_add_f32 v{ACC}, v{AS}, v{ACC}
    v_lshrrev_b32 v{T0}, 6, v0""")
    fill = [f"v_bfe_u32 v{T1}, v0, 3, 2", f"v_lshl_add_u32 v{T0}, v{T0}, 2, v{T1}", f"v_and_b32 v{T1}, 32, v0"]
    for ctl in ("quad_perm:[1,0,3,2]", "quad_perm:[2,3,0,1]", "row_half_mirror"):
        E(f"v_add_f32_dpp v{SUM}, v{SUM}, v{SUM} {ctl} row_mask:0xf bank_mask:0xf")
        E(f"v_add_f32_dpp v{ACC}, v{ACC}, v{ACC} {ctl} row_mask:0xf bank_mask:0xf")
        E(fill.pop(0))
    E(f"""v_rcp_f32 v{ZS}, v{SUM}
    s_lshl_b32 s18, s2, 6
    v_add3_u32 v{T0}, v{T0}, v{T1}, s18""")
    if fast:
        lo, hi = (127 - 64) << 23, (127 + 100) << 23
        E(f"""v_mul_f32 v{ACC}, {f32(2.0**-PSH)}, v{ACC}
        v_subrev_u32 v{SUM}, {lo}, v{SUM}
        v_mul_f32 v{ACC}, v{ACC}, v{ZS}
        v_cmp_lt_u32 vcc, {hi-lo}, v{SUM}
        s_movk_i32 s18, 0x207
        v_cmp_class_f32_e64 {sp(S_T)}, v{ACC}, s18
        v_lshlrev_b32 v{T0}, 1, v{T0}
        v_cvt_pk_bf16_f32 v{ACC}, v{ACC}, v{ACC}
        s_or_b64 {sp(S_T)}, vcc, {sp(S_T)}
        s_cbranch_scc1 L_slow
        s_cmp_lg_u32 s{S_FLAG}, 0
        s_cbranch_scc1 L_slow""")
    else:
        E(f"""v_mul_f32 v{ACC}, v{ACC}, v{ZS}
        v_lshlrev_b32 v{T0}, 1, v{T0}
        v_cvt_pk_bf16_f32 v{ACC}, v{ACC}, v{ACC}""")
    E(f"""s_mov_b32 exec_lo, 0x01010101
    s_mov_b32 exec_hi, 0x01010101
    global_store_short v{T0}, v{ACC}, s[16:17]{["", " sc0 sc1", " nt", " sc1"][OPT["stpol"]]}""")

def dump_stamps(E, n):
    if OPT["stamps"] == 3:
        E(f"""v_readfirstlane_b32 s18, v0
        s_sub_u32 s19, s{40+2*OPT['amp']}, s40
        s_lshl_b32 s19, s19, 3
        s_add_u32 s19, s19, 3000
        s_cmp_lg_u32 s18, {64*OPT.get('ampw',0)}
        s_cbranch_scc1 L_end
        s_cmp_lg_u32 s2, 100
        s_cbranch_scc1 L_end
        L_spin:
        s_memrealtime s[4:5]
        s_waitcnt lgkmcnt(0)
        s_sub_u32 s4, s4, s40
        s_cmp_lt_u32 s4, s19
        s_cbranch_scc1 L_spin""")
        return
    if OPT["stamps"] == 2:
        E("s_load_dwordx2 s[4:5], s[0:1], 72\ns_mov_b64 exec, 1\nv_mov_b32 v1, 0\ns_waitcnt lgkmcnt(0)")
        for k in range(n):
            E(f"v_mov_b32 v2, s{40+2*k}\nv_not_b32 v3, v2\nglobal_atomic_umax v1, v3, s[4:5] offset:{8*k}\nglobal_atomic_umax v1, v2, s[4:5] offset:{8*k+4}\ns_nop 1")
        return
    E("s_load_dwordx2 s[4:5], s[0:1], 80\ns_mov_b64 exec, 1\nv_lshrrev_b32 v1, 6, v0\ns_lshl_b32 s18, s2, 3\nv_add_u32 v1, s18, v1\nv_lshlrev_b32 v1, 7, v1\ns_waitcnt lgkmcnt(0)")
    for k in range(n):
        E(f"v_mov_b32 v2, s{40+2*k}\nv_mov_b32 v3, s{64+2*k}\nglobal_store_dwordx2 v1, v[2:3], s[4:5] offset:{8*k}\ns_nop 1")
    E("s_getreg_b32 s18, hwreg(HW_REG_HW_ID)\ns_getreg_b32 s19, hwreg(HW_REG_XCC_ID)\nv_mov_b32 v2, s18\nv_mov_b32 v3, s19\nglobal_store_dwordx2 v1, v[2:3], s[4:5] offset:120")

FLEX = ("v_add_f32", "v_exp_f32", "v_fmac_f32", "v_mul_f32")
def size(i):
    if i.kind == "none": return 0
    if i.kind in ("mfma", "ds", "vmem", "smem"): return 8
    if i.kind == "valu" and (i.mn.endswith("_e64") or i.mn.startswith(("v_pk_", "v_cvt_pk", "v_lshl_add"))): return 8
    assert i.mn in FLEX or i.mn in ("s_waitcnt", "s_nop", "s_setprio", "s_cbranch_scc1"), i.text
    return 4
def align8(block):
    out, run = [], []
    def flush():
        if len(run) % 2:
            fl = [k for k, x in enumerate(run) if x.mn in FLEX]
            if fl:
                k = fl[-1] if fl[-1] % 2 == 0 else None
                k = next((j for j in reversed(fl) if j % 2 == 0), None)
                if k is not None: run[k] = I(run[k].text.replace(run[k].mn, run[k].mn + "_e64", 1))
                else: run.append(I("s_nop 0"))
            else: run.append(I("s_nop 0"))
        out.extend(run); run.clear()
    for i in block:
        if size(i) == 4: run.append(i)
        else: flush(); out.append(i)
    flush()
    return out

def program(fast):
    E = Emitter(); sfx = "" if fast else "_x"
    prio = fast and OPT["prio"]
    first = range(4) if OPT["clate"] else range(7)
    if fast:
        E("s_cmp_ge_u32 s2, 256\ns_cbranch_scc1 L_end")
        stamp(E, 0)
        if prio: E("s_setprio 2")
        head(E, True)
        E(f"s_mov_b32 s{S_FLAG}, {OPT['force_slow']}\ns_mov_b32 s{S_JOB}, 0")
        E(f"s_cmp_ge_u32 s{S_W}, 256\ns_cbranch_scc1 L_y1")
        b0 = pad(E.take())
        E("s_waitcnt lgkmcnt(0)"); idx_loads(E, 0)
        o1 = pad(E.take(), [b0]); vq_idx = list(E.vq)
        E.vq = []
        E(f"L_y1:\ns_cmp_lg_u32 s{S_W}, 256\ns_cbranch_scc1 L_c1")
        y1a = E.take()
        param_loads(E, True); E("s_branch L_c1")
        y1b = pad(E.take(), [b0 + y1a]); vq_par = list(E.vq)
        E("L_c1:"); lane_consts(E, U_, Y4)
        E(f"v_and_b32 v{T2}, 63, v0\nv_lshlrev_b32 v{T2}, 4, v{T2}\nv_add_u32 v{T2}, {PAR}, v{T2}")
        E(f"s_cmp_ge_u32 s{S_W}, 256\ns_cbranch_scc1 L_y2")
        c1 = pad(E.take(), [o1, y1b])
        E(f"L_y2:\ns_cmp_lg_u32 s{S_W}, 256\ns_cbranch_scc1 L_y3")
        y2a = E.take()
        params(E, True)
        for k, b in enumerate(PARQ): E(f"ds_write_b128 v{T2}, {r(b,4)} offset:{1024*k}")
        y2b = pad(E.take(), [c1 + y2a])
        E("L_y3:\ns_waitcnt lgkmcnt(0)\ns_barrier"); idx_loads(E, 0); E("s_branch L_g")
        y3 = pad(E.take(), [y2b, c1])
        E.vq = vq_idx
        E("L_g:"); gathers0(E, first)
        if not OPT["clate"]: idx_loads(E, 1)
        stamp(E, 1)
        E(f"s_cmp_ge_u32 s{S_W}, 256\ns_cbranch_scc1 L_p")
        g = pad(E.take(), [c1, y3])
        bar = [I("s_barrier")]
        E("L_p:")
        for k, b in enumerate(PARQ): E(f"ds_read_b128 {r(b,4)}, v{T2} offset:{1024*k}")
        stamp(E, 2)
        conv(E, 0, True)
        if prio: E("s_setprio 1")
        stamp(E, 3)
        p = pad(E.take(), [g])
        layout_pre = b0 + o1 + c1 + g + bar + p
        layout_post = y1a + y1b + y2a + y2b + y3
        pres = [b0 + o1 + c1 + g + bar + p, b0 + y1a + y1b + c1 + y2a + y2b + y3 + g + p, b0 + y1a + c1 + y2a + y3 + g + p]
    else:
        E("L_slow:\ns_setprio 0")
        head(E, False); idx_loads(E, 0); idx_loads(E, 1); param_loads(E, False)
        lane_consts(E, U_, Y4)
        gathers0(E, range(7)); params(E, False)
        E(f"s_mov_b32 s{S_JOB}, 0")
        conv(E, 0, False)
        layout_pre = pad(E.take()); layout_post = []; pres = [layout_pre]
    segs = main(E, fast)
    tail = [I(f"s_cbranch_scc1 L_final{sfx}")]
    if fast: stamp(E, 4)
    if prio: E("s_setprio 2")
    E(f"s_mov_b32 s{S_JOB}, 1\nv_mov_b32 v{ZS}, v{SUM}\nv_mov_b32 v{AS}, v{ACC}")
    if not fast: gathers1(E)
    conv(E, 1, fast)
    if prio: E("s_setprio 0")
    if fast: stamp(E, 5)
    E(f"s_branch L_main{sfx}")
    mid = E.take()
    E.vq, E.lq = [], []
    E(f"L_final{sfx}:")
    if fast: stamp(E, 6)
    final(E, fast)
    if fast and OPT["stamps"]:
        stamp(E, 7); dump_stamps(E, 8)
    if fast: E("L_end:")
    E("s_endpgm")
    fin = E.take()
    al = align8 if fast and OPT["align"] else (lambda x: x)
    segs[0] = al(pad(segs[0], [layout_pre, pad(mid)]))
    if fast:
        segs[1] = al(pad(segs[1], [segs[0]]))
        segs[2] = al(pad(segs[2], [segs[0], segs[1]]))
        run0, run1 = segs[0] + segs[1] + segs[2] + tail, segs[0] + segs[2] + tail
    else:
        run0 = run1 = segs[0] + tail
    mid = pad(mid, [run0]); fin = pad(fin, [run0])
    for pre in pres: check_trace(pre + run0 + mid + run1 + fin)
    return layout_pre + [I(".p2align 3"), I(f"L_main{sfx}:")] + run0 + mid + fin + layout_post

HEAD = open("cdna_kernels/" + NAME + ".s.ref").read().split("; Override launch")[0]
out = HEAD + f"""; @launch grid=(256,1,1) block=(512,1,1) lds={PAR+10240}
; Generated by gen/gen.py.
.amdgcn_target "amdgcn-amd-amdhsa--gfx950"
.text
.globl {NAME}_kernel
.p2align 8
.type {NAME}_kernel,@function
{NAME}_kernel:
"""
fastp, slowp = program(True), program(False)
for i in fastp + slowp:
    out += (i.text if i.kind == "none" else "    " + i.text) + "\n"
out += f""".section .rodata,"a"
.p2align 6
.amdhsa_kernel {NAME}_kernel
  .amdhsa_next_free_vgpr 256
  .amdhsa_next_free_sgpr 96
  .amdhsa_accum_offset 256
  .amdhsa_group_segment_fixed_size 0
  .amdhsa_kernarg_size 88
  .amdhsa_user_sgpr_count 2
  .amdhsa_user_sgpr_kernarg_segment_ptr 1
  .amdhsa_system_sgpr_workgroup_id_x 1
  .amdhsa_float_denorm_mode_32 3
.end_amdhsa_kernel
"""
open(sys.argv[1], "w").write(out)
nn = sum(int(i.ops[0]) + 1 for i in fastp if i.mn == "s_nop")
print("fast instrs", len(fastp), "nop states", nn, "slow instrs", len(slowp))
```

```python
import sys, struct, math
from asmlib import *

NAME = "standalone__factorization_afm__recsys"
OPT = dict(stamps=0, force_slow=0, align=1, prio=1, nt=1, cq=7, clate=0, jq=14, stpol=0)
for a in sys.argv[2:]:
    k, v = a.split("="); OPT[k] = int(v)

def f32(x): return "0x%08x" % struct.unpack("<I", struct.pack("<f", x))[0]
def r(b, n=1): return f"v{b}" if n == 1 else f"v[{b}:{b+n-1}]"

IDX, R0, R1, R3, R4, RT2, RT3, RB, RU, RV, RZ, RM, RW = range(1, 14)
SUM, ACC, T0, T1, ZS, AS, CH16, T2 = range(14, 22)
OFF1, INF, C, D0, W, ALS, AH, AID, P0, Q, SD, RAW, F = 22, 28, 32, 48, 80, 88, 96, 104, 112, 128, 136, 148, 172
NF = 9
SPARE = 244
CH, WLDS = 2080, 8320
PAR = 8 * WLDS
LOG2E = math.log2(math.e)
PSH = 6
S_MPAR, S_MT, S_MB, S_M0, S_M1, S_FLAG, S_JOB, S_T, S_W = 24, 26, 28, 30, 32, 34, 35, 36, 38
def sp(b): return f"s[{b}:{b+1}]"

VERT = {}
for nm, o in (("A", 0), ("B", 1), ("C", 2)):
    for x, reg in ((0, R0), (1, R1), (3, R3)):
        VERT[f"{nm}{x}"] = (reg, 512 * o, (lambda c, o=o, x=x: (o, (x + c) % 8)))
VERT["I1"] = (RB, 1536, lambda c: (3, 0))
VERT["I2"] = (RB, 1552, lambda c: (3, 1))
VERT["T1"] = (R4, 0, lambda c: (0, (c + 4) % 8))
VERT["T2"] = (RT2, 512, lambda c: (2 if c >= 4 else 1, (c + 4) % 8))
VERT["T3"] = (RT3, 1024, lambda c: (1 if c >= 4 else 2, (c + 4) % 8))
VERT["U"] = (RU, 0, lambda c: (3, 0) if c >= 4 else (0, c))
VERT["V"] = (RV, 0, lambda c: (3, 1) if c >= 4 else (0, c + 4))
STEPS = """A0A1 A0A3 A1A3 A0B0 A1B0 A3B0 A0B1 A3B1 B0B1 A0B3 A1B3 B0B3 B1B3
A0C3 A1C3 B0C3 B1C3 A1C0 B1C0 C0C3 A0C0 B0C0 A3C0 B3C0 C1C3 A3C1 B3C1 A0C1 B0C1 C0C1
I1A0 I1B0 I1C0 I2A0 I2B0 I2C0 T1B0 T1C0 T2B0 T3C0""".split()
STEPS = [(s[:2], s[2:]) for s in STEPS] + [("U", "V")]
NS = len(STEPS)
seen = set()
for q, (a, b) in enumerate(STEPS):
    for c in range(8):
        if q == NS - 1 and c >= 5: continue
        e = frozenset((VERT[a][2](c), VERT[b][2](c)))
        assert len(e) == 2 and e not in seen
        seen.add(e)
assert len(seen) == 325 and NS == 41
FIRST = {}; LAST = {}
for q, ab in enumerate(STEPS):
    for v in ab:
        FIRST.setdefault(v, q); LAST[v] = q
NK = (NS + 1) // 2

def probe(E, n):
    if OPT["stamps"] == 3 and OPT["probe"] == n:
        lq = [x for x in E.lq if x.kind == "ds"]
        E("s_memrealtime s[42:43]\ns_waitcnt lgkmcnt(0)")
        E.lq = lq
def stamp(E, n):
    if OPT["stamps"] == 3:
        if n == 0: E("s_memrealtime s[40:41]\ns_mov_b32 s42, 0")
        probe(E, n)
        return
    if OPT["stamps"]:
        E(f"s_memrealtime s[{40+2*n}:{41+2*n}]")
        E(f"s_memtime s[{64+2*n}:{65+2*n}]")
        E("s_waitcnt lgkmcnt(0)")

I0 = P0
GI = INF
W32, BB, W16, HB, PB, XX, YY, TM = F, F + 8, F + 16, F + 24, F + 28, F + 32, F + 36, F + 40

U_, A_, VA, VB, X8, Y4, H16, K16, AW, AW16 = range(TM, TM + 10)
def head(E, first):
    if first:
        E(f"""s_load_dwordx2 s[4:5], s[0:1], 0
        s_load_dwordx2 s[20:21], s[0:1], 8
        s_load_dwordx8 s[8:15], s[0:1], 32
        s_load_dwordx2 s[16:17], s[0:1], 64
        v_readfirstlane_b32 s{S_W}, v0""")
    E(f"""v_lshrrev_b32 v{A_}, 4, v0
    s_mul_i32 s18, s2, 6656
    v_bfe_u32 v{U_}, v0, 2, 2
    v_mul_u32_u24 v{A_}, 104, v{A_}
    s_movk_i32 s19, 416
    v_add_u32 v{A_}, s18, v{A_}
    v_and_b32 v{X8}, 8, v0
    v_mad_u32_u24 v{VA}, v{U_}, 24, v{A_}
    v_and_b32 v{Y4}, 4, v0
    v_mad_u32_u24 v{VB}, v{X8}, s19, v{A_}
    v_add_u32 v{VB}, v{VB}, v{Y4}""")
    if first:
        E("""s_mov_b32 s22, 6400000
        s_mov_b32 s23, 0x00020000""")

def idx_loads(E, job):
    nt = " nt" if OPT["nt"] else ""
    if job == 0:
        E(f"""global_load_dwordx4 {r(I0,4)}, v{VA}, s[4:5]{nt}
        global_load_dwordx2 {r(I0+4,2)}, v{VA}, s[4:5] offset:16{nt}
        global_load_dword v{I0+6}, v{VB}, s[4:5] offset:96{nt}""")
    else:
        E(f"""global_load_dwordx4 {r(OFF1,4)}, v{VA}, s[4:5] offset:3328{nt}
        global_load_dwordx2 {r(OFF1+4,2)}, v{VA}, s[4:5] offset:3344{nt}""")

def param_loads(E, fast):
    E(f"""v_lshrrev_b32 v{H16}, 1, v0
    v_and_b32 v{AW}, 19, v0
    v_and_b32 v{H16}, 16, v{H16}
    v_and_b32 v{K16}, 48, v0
    v_lshl_add_u32 v{AW}, v{AW}, 6, v{H16}
    v_and_b32 v{AW16}, 14, v0
    v_lshl_add_u32 v{AW}, v{Y4}, 7, v{AW}
    v_lshl_add_u32 v{AW16}, v{AW16}, 7, v{K16}
    v_lshl_add_u32 v{AW}, v{X8}, 5, v{AW}
    v_and_b32 v{A_}, 1, v0
    v_lshl_add_u32 v{AW16}, v{A_}, 6, v{AW16}""")
    if fast: E("s_waitcnt lgkmcnt(0)")
    E(f"""global_load_dwordx4 {r(W32,4)}, v{AW}, s[8:9]
    global_load_dwordx4 {r(W32+4,4)}, v{AW}, s[8:9] offset:32
    global_load_dwordx4 {r(BB,4)}, v{H16}, s[10:11]
    global_load_dwordx4 {r(BB+4,4)}, v{H16}, s[10:11] offset:32
    global_load_dwordx4 {r(HB,4)}, v{K16}, s[12:13]
    global_load_dwordx4 {r(PB,4)}, v{K16}, s[14:15]""")
    if fast:
        E(f"""global_load_dwordx4 {r(W16,4)}, v{AW16}, s[8:9]
        global_load_dwordx4 {r(W16+4,4)}, v{AW16}, s[8:9] offset:128""")

def lane_consts(E, u, y4):
    t, l16, one = TM + 10, TM + 11, TM + 12
    z = D0
    E(f"""v_lshrrev_b32 v{t}, 6, v0
    s_movk_i32 s18, {CH}
    v_mul_u32_u24 v{RZ}, {WLDS}, v{t}
    v_and_b32 v{t}, 3, v0
    v_lshlrev_b32 v{CH16}, 4, v{t}
    v_mad_u32_u24 v{RW}, v{t}, s18, v{RZ}
    v_bfe_u32 v{t}, v0, 4, 2
    v_lshl_add_u32 v{RW}, v{u}, 4, v{RW}
    v_lshl_add_u32 v{RW}, v{t}, 7, v{RW}
    v_bfe_u32 v{t}, v0, 5, 1
    v_mad_u32_u24 v{RB}, v{t}, s18, v{RZ}
    v_and_b32 v{t}, 24, v0
    v_and_b32 v{l16}, 7, v0
    v_lshl_add_u32 v{RB}, v{t}, 4, v{RB}
    v_lshl_add_u32 v{R0}, v{l16}, 4, v{RB}
    v_xor_b32 v{t}, 4, v{l16}
    v_lshl_add_u32 v{R4}, v{t}, 4, v{RB}
    v_add_u32 v{t}, 1, v{l16}
    v_and_b32 v{t}, 7, v{t}
    v_lshl_add_u32 v{R1}, v{t}, 4, v{RB}
    v_add_u32 v{t}, 3, v{l16}
    v_and_b32 v{t}, 7, v{t}
    v_lshl_add_u32 v{R3}, v{t}, 4, v{RB}
    v_lshlrev_b32 v{t}, 7, v{y4}
    s_mov_b32 s{S_MB}, 0xf0f0f0f0
    v_add_u32 v{RT2}, v{R4}, v{t}
    s_mov_b32 s{S_MB+1}, s{S_MB}
    v_sub_u32 v{RT3}, v{R4}, v{t}
    v_add_u32 v{t}, 1536, v{RB}
    s_mov_b32 s{S_M0}, 0xe0e0e0e0
    v_cndmask_b32_e64 v{RU}, v{R0}, v{t}, {sp(S_MB)}
    v_add_u32 v{t}, 16, v{t}
    s_mov_b32 s{S_M0+1}, -1
    v_cndmask_b32_e64 v{RV}, v{R4}, v{t}, {sp(S_MB)}
    v_add_u32 v{t}, 16, v{RZ}
    v_mov_b32 v{z}, 0xff800000
    v_cndmask_b32_e64 v{RM}, v{RZ}, v{t}, {sp(S_M0)}
    v_cndmask_b32_e64 v{z}, 0, v{z}, {sp(S_M0)}
    v_mov_b32 v{z+1}, 0
    v_mov_b64 {r(z+2,2)}, 0
    s_mov_b32 s{S_MPAR}, 0xaaaaaaaa
    ds_write_b128 v{RM}, {r(z,4)} offset:2048
    s_mov_b32 s{S_MPAR+1}, s{S_MPAR}
    v_mov_b32 v{t}, 0x4444
    v_mov_b32 v{IDX}, 0xeeee
    s_mov_b32 s{S_MT}, 0xcccccccc
    v_cndmask_b32_e64 v{IDX}, v{t}, v{IDX}, {sp(S_MPAR)}
    v_mov_b32 v{t}, 0x3f80
    s_mov_b32 s{S_MT+1}, s{S_MT}
    v_cndmask_b32_e64 v{one}, v{t}, 1.0, {sp(S_MPAR)}
    s_mov_b32 s{S_M0}, 3
    s_mov_b32 s{S_M0+1}, 48""")
    for R in range(8):
        sh = 8 * (R // 2) + 2 * (R % 2)
        m = S_M0
        if sh:
            m = S_M1 if R % 2 else S_T
            E(f"s_lshl_b64 {sp(m)}, {sp(S_M0)}, {sh}")
        E(f"v_cndmask_b32_e64 v{AID+R}, 0, v{one}, {sp(m)}")

def gather(E, idx, dst):
    E(f"buffer_load_dwordx4 {r(dst,4)}, v{idx}, s[20:23], 0 offen")

def gathers0(E, which):
    for t in which:
        i, d = (I0 + t, RAW + 4 * t) if t < 6 else (I0 + 6, GI)
        E.wait(f"v{i}")
        E(f"v_lshl_add_u32 v{i}, v{i}, 6, v{CH16}")
        gather(E, i, d)
def gathers1(E):
    E.wait(r(OFF1, 6))
    for t in range(6):
        E(f"v_lshl_add_u32 v{OFF1+t}, v{OFF1+t}, 6, v{CH16}")
        gather(E, OFF1 + t, RAW + 4 * t)
PARQ = [W, W+4, C, C+4, C+8, C+12, ALS, ALS+4, AH, AH+4]

def params(E, fast):
    D1 = D0 + 16
    E.wait(r(W32, 8))
    E(f"v_mfma_f32_32x32x16_bf16 {r(D1,16)}, {r(W32,4)}, {r(AID,4)}, 0")
    E(f"v_mfma_f32_32x32x16_bf16 {r(D1,16)}, {r(W32+4,4)}, {r(AID+4,4)}, {r(D1,16)}")
    E.wait(r(BB, 8))
    E(f"v_mfma_f32_32x32x16_bf16 {r(C,16)}, {r(AID,4)}, {r(BB,4)}, 0")
    E(f"v_mfma_f32_32x32x16_bf16 {r(C,16)}, {r(AID+4,4)}, {r(BB+4,4)}, {r(C,16)}")
    E.wait(r(HB, 8))
    vh, vp, pf, kk = TM + 14, TM + 16, TM + 18, TM + 22
    for j in range(2):
        E(f"v_cndmask_b32_e64 v{vh+j}, v{HB+2*j}, v{HB+2*j+1}, {sp(S_MPAR)}")
        E(f"v_cndmask_b32_e64 v{vp+j}, v{PB+2*j}, v{PB+2*j+1}, {sp(S_MPAR)}")
    if fast:
        E.wait(r(W16, 8))
        E(f"v_mfma_f32_16x16x32_bf16 {r(XX,4)}, {r(W16,4)}, {r(HB,4)}, 0")
        E(f"v_mfma_f32_16x16x32_bf16 {r(YY,4)}, {r(W16+4,4)}, {r(HB,4)}, 0")
    E(f"s_mov_b32 s{S_M0}, 0x00030003\ns_mov_b32 s{S_M0+1}, s{S_M0}")
    for g in range(4):
        m = S_M0
        if g:
            m = S_M1 if g % 2 else S_T
            E(f"s_lshl_b64 {sp(m)}, {sp(S_M0)}, {4*g}")
        for j in range(2):
            E(f"v_cndmask_b32_e64 v{AH+2*g+j}, 0, v{vh+j}, {sp(m)}")
    if fast:
        E(f"s_mov_b32 s18, {f32(LOG2E/2)}")
        E(f"s_mov_b32 s19, {f32(2.0**-7)}")
        for j in range(2):
            E(f"v_lshlrev_b32 v{pf+2*j}, 16, v{vp+j}")
            E(f"v_and_b32 v{pf+2*j+1}, 0xffff0000, v{vp+j}")
        E(f"v_mov_b32 v{kk}, s18")
        E(f"v_mov_b32 v{kk+1}, {f32(2.0**PSH)}")
        E(f"v_cmp_le_f32_e64 vcc, s19, |v{D1}|")
        E(f"v_cndmask_b32_e64 v{kk+1}, v{kk}, v{kk+1}, {sp(S_MT)}")
        for k in range(8):
            E(f"v_mul_f32 v{D1+2*k}, v{kk}, v{D1+2*k}")
            E(f"v_mul_f32 v{D1+2*k+1}, v{kk}, v{D1+2*k+1}")
            if k == 0:
                E(f"s_cmp_eq_u64 vcc, 0\ns_cselect_b32 s18, -1, s18")
            E(f"v_cvt_pk_f16_f32 v{W+k}, v{D1+2*k}, v{D1+2*k+1}")
        for k in range(4):
            E(f"v_cndmask_b32_e64 v{XX+k}, v{XX+k}, v{YY+k}, {sp(S_MPAR)}")
            E(f"v_cndmask_b32_e64 v{XX+k}, v{XX+k}, v{pf+k}, {sp(S_MT)}")
            E(f"v_mul_f32 v{XX+k}, v{kk+1}, v{XX+k}")
        E(f"v_cmp_le_f32_e64 vcc, s19, |v{XX}|")
        for j in range(2):
            E(f"v_cvt_pk_f16_f32 v{vp+j}, v{XX+2*j}, v{XX+2*j+1}")
        E(f"""s_and_b64 {sp(S_T)}, vcc, {sp(S_MT)}
        s_cselect_b32 s18, s18, -1
        s_andn2_b64 {sp(S_T)}, vcc, {sp(S_MT)}
        s_cselect_b32 s18, s18, -1""")
        for k in range(16):
            E(f"v_mul_f32 v{C+k}, s18, v{C+k}")
    else:
        for k in range(8):
            E(f"v_cvt_pk_bf16_f32 v{W+k}, v{D1+2*k}, v{D1+2*k+1}")
    E(f"s_mov_b32 s{S_M0}, {'0x000f000f' if fast else '0x000c000c'}\ns_mov_b32 s{S_M0+1}, s{S_M0}")
    for g in range(4):
        m = S_M0
        if g:
            m = S_M1 if g % 2 else S_T
            E(f"s_lshl_b64 {sp(m)}, {sp(S_M0)}, {4*g}")
        for j in range(2):
            E(f"v_cndmask_b32_e64 v{ALS+2*g+j}, 0, v{vp+j}, {sp(m)}")

PRE = ["A0", "A1", "A3", "B0"]
def slot_reg(s): return F + 8 * s
def rd(E, v, s, t):
    reg, off, _ = VERT[v]
    E(f"ds_read_b128 {r(slot_reg(s)+4*t,4)}, v{reg} offset:{off + 2*CH*t}")
def zinit(E, k):
    E(f"ds_read_b128 {r(SD+4*(k%3),4)}, v{RM if k == NK-1 else RZ} offset:2048")

def mm(E, d, g, hi):
    E.wait(r(g, 4))
    E(f"v_mfma_f32_32x32x16_bf16 {r(d,16)}, {r(AID+4*hi,4)}, {r(g,4)}, {r(d,16) if hi else 0}")
def cv(dst, d, ks):
    return [f"v_cvt_pk_f16_f32 v{dst+k}, v{d+2*k}, v{d+2*k+1}" for k in ks]
def wr(E, src, off):
    E.wait(r(src, 4))
    E(f"ds_write_b128 v{RW}, {r(src,4)} offset:{off}")

def conv(E, job, fast):
    D1 = D0 + 16; P1 = P0 + 8
    if fast:
        if job: wr(E, INF, 1536 - 32)
        mm(E, D0, RAW, 0); mm(E, D0, RAW+4, 1)
        if job == 0: probe(E, 13)
        if job == 0 and OPT["clate"]:
            gathers0(E, (4, 5, 6)); idx_loads(E, 1)
        mm(E, D1, RAW+8, 0); mm(E, D1, RAW+12, 1)
        E(f"s_mov_b32 s19, {f32(0.125)}")
        E(f"v_cmp_le_f32_e64 vcc, s19, |v{D0}|")
        E("\n".join(cv(P1, D0, range(4)))); wr(E, P1, 0)
        E("\n".join(cv(P1, D0, range(4, 8)))); wr(E, P1+4, 64)
    else:
        wr(E, RAW, 0); wr(E, RAW+4, 64)
    for s, v in enumerate(PRE[:3]):
        rd(E, v, s, 0); rd(E, v, s, 1)
    zinit(E, 0)
    if fast:
        E("\n".join(cv(Q, D1, range(4)))); wr(E, Q, 512)
        E(f"""s_and_b32 s18, vcc_lo, 0xffff
        s_cselect_b32 s{S_FLAG}, s{S_FLAG}, 1
        s_lshr_b32 s18, vcc_lo, 16
        s_cselect_b32 s{S_FLAG}, s{S_FLAG}, 1""")
        E("\n".join(cv(Q, D1, range(4, 8)))); wr(E, Q+4, 576)
        E(f"""s_and_b32 s18, vcc_hi, 0xffff
        s_cselect_b32 s{S_FLAG}, s{S_FLAG}, 1
        s_lshr_b32 s18, vcc_hi, 16
        s_cselect_b32 s{S_FLAG}, s{S_FLAG}, 1""")
    else:
        wr(E, RAW+8, 512); wr(E, RAW+12, 576)
        wr(E, INF, 1536 - 32 * job)
        wr(E, RAW+16, 1024); wr(E, RAW+20, 1088)
    rd(E, PRE[3], 3, 0); rd(E, PRE[3], 3, 1)
    E(f"s_cmp_lg_u32 s{S_JOB}, 0")

EV = [RAW + k for k in range(21)]
SV = [RAW+21, RAW+22, RAW+23] + [AID + k for k in range(8)] + [SPARE + k for k in range(10)]
def main(E, fast):
    slot = {v: s for s, v in enumerate(PRE)}
    free = list(range(len(PRE), NF))
    todo = sorted([v for v in VERT if v not in PRE], key=lambda v: FIRST[v])
    half = []
    zq = list(range(1, NK))
    zfree = {1: -9, 2: -9}
    ty = "f16" if fast else "bf16"
    def pk(q, ks):
        if not 0 <= q < NS: return []
        a, b = (slot_reg(slot[v]) for v in STEPS[q]); P = P0 + 8 * (q % 2)
        if fast: return [f"v_pk_mul_f16 v{P+k}, v{a+k}, v{b+k}" for k in ks]
        return [f"""v_lshlrev_b32 v{T0}, 16, v{a+k}
                v_lshlrev_b32 v{T1}, 16, v{b+k}
                v_mul_f32 v{T0}, v{T0}, v{T1}
                v_and_b32 v{T1}, 0xffff0000, v{a+k}
                v_and_b32 v{T2}, 0xffff0000, v{b+k}
                v_mul_f32 v{T1}, v{T1}, v{T2}
                v_cvt_pk_bf16_f32 v{P+k}, v{T0}, v{T1}""" for k in ks]
    def cvt(q, ks):
        if not 0 <= q < NS: return []
        D = D0 + 16 * (q % 2)
        if fast: return [f"v_cvt_pk_bf16_f32 v{Q+k}, |v{D+2*k}|, |v{D+2*k+1}|" for k in ks]
        return [f"v_cvt_pk_bf16_f32 v{Q+k}, v{D+2*k}, v{D+2*k+1}\nv_pk_max_i16 v{Q+k}, v{Q+k}, 0" for k in ks]
    CQ, JQ = OPT["cq"], OPT["jq"]
    DC = slot_reg(NF - 2)
    ready = {v: (CQ + 3 if v[0] == "C" or v in ("T2", "T3") else JQ + 1 if v[0] in "IUV" else -9) if fast else -9 for v in VERT}
    held = [NF - 2, NF - 1] if fast else []
    free = [x for x in free if x not in held]
    wq = []
    def shadow(q):
        shadow_read(q)
        if wq: wr(E, *wq.pop(0))
    def shadow_read(q):
        cand = []
        if zq and zfree.get(zq[0], 99) <= q: cand.append((2 * zq[0] - 0.5, "z"))
        if half: cand.append((FIRST[half[0]] - 1, "h"))
        elif todo and free and ready[todo[0]] <= q: cand.append((FIRST[todo[0]] - 1, "f"))
        if not cand: return
        what = min(cand)[1]
        if what == "z": zinit(E, zq.pop(0))
        elif what == "h":
            v = half.pop(0); rd(E, v, slot[v], 1)
        else:
            v = todo.pop(0); slot[v] = free.pop(0); rd(E, v, slot[v], 0); half.append(v)
    def soft(k, part):
        if not 0 <= k < NK: return []
        sd = SD + 4 * (k % 3)
        if not fast:
            return [f"v_add_f32 v{EV[k]}, v{sd}, v{sd+1}", f"v_add_f32 v{SV[k]}, v{sd+2}, v{sd+3}"] if part == 0 else []
        w = SUM if k == 0 else T0
        if part == 0: return [f"v_add_f32 v{T0}, v{sd}, v{sd+1}", f"v_exp_f32 v{w}, v{T0}"]
        if k == 0: return [f"v_mul_f32 v{ACC}, v{w}, v{sd+2}", f"v_fmac_f32 v{ACC}, v{w}, v{sd+3}"]
        return [f"v_add_f32 v{SUM}, v{SUM}, v{w}", f"v_fmac_f32 v{ACC}, v{w}, v{sd+2}", f"v_fmac_f32 v{ACC}, v{w}, v{sd+3}"]
    def out(L):
        for x in L: E(x)
    E.wait(r(slot_reg(0), 16))
    out(pk(0, range(8)))
    segs = []
    for q in range(NS + 1):
        live = q < NS
        P = P0 + 8 * (q % 2); D = D0 + 16 * (q % 2)
        so = soft((q - 3) // 2, 0) if q % 2 else soft((q - 4) // 2, 1)
        extra = fast and q in (CQ, CQ + 1)
        if live: E(f"v_mfma_f32_32x32x16_{ty} {r(D,16)}, {r(W,4)}, {r(P,4)}, {r(C,16)}")
        out(cvt(q - 1, range(6)))
        if live: E(f"v_mfma_f32_32x32x16_{ty} {r(D,16)}, {r(W+4,4)}, {r(P+4,4)}, {r(D,16)}")
        nxt = [r(slot_reg(slot[v]), 8) for v in STEPS[q + 1]] if q + 1 < NS else []
        assert not live or q // 2 not in zq
        assert q + 1 >= NS or not set(STEPS[q + 1]) & set(half)
        if live: E.wait(r(SD + 4 * ((q // 2) % 3), 4), *nxt)
        if so: E(so.pop(0))
        out(cvt(q - 1, range(6, 8)))
        p = pk(q + 1, range(8))
        n1, n2 = (3, 4) if extra else (4, 6)
        out(p[:n1])
        if fast and q == CQ + 2:
            out(cv(RAW, DC, range(4))); wq.append((RAW, 1024))
        if q % 2 == 0 and not extra:
            out(so); so = []
        if q % 2 == 0 and q >= 4: zfree[(q - 4) // 2 + 3] = q + extra
        if live: E(f"v_smfmac_f32_16x16x64_{ty} {r(SD+4*((q//2)%3),4)}, {r(ALS+4*(q%2),4)}, {r(P,8)}, v{IDX}")
        shadow(q)
        out(p[n1:n2])
        if fast and q == CQ + 2:
            out(cv(RAW, DC, range(4, 8))); wq.append((RAW + 4, 1088))
            free += held
        if q >= 1: E(f"v_smfmac_f32_16x16x64_bf16 {r(SD+4*(((q-1)//2)%3),4)}, {r(AH+4*((q-1)%2),4)}, {r(Q,8)}, v{IDX}")
        if extra:
            if q == CQ: E("s_waitcnt vmcnt(0)")
            else: shadow(q)
            out(p[n2:n2+1]); n2 += 1
            mm(E, DC, RAW + 16 + 4 * (q - CQ), q - CQ)
        else: shadow(q)
        out(p[n2:]); out(so)
        if fast and q == JQ:
            E("s_cbranch_scc1 L_skip")
            segs.append(E.take()); lq = list(E.lq)
            mm(E, RAW, GI, 0)
            for t in range(6): E(f"v_lshl_add_u32 v{OFF1+t}, v{OFF1+t}, 6, v{CH16}")
            for t in (4, 5): gather(E, OFF1 + t, RAW + 4 * t)
            out(cv(INF, RAW, range(4)))
            for t in range(4): gather(E, OFF1 + t, RAW + 4 * t)
            wr(E, INF, 1536)
            segs.append(E.take()); E.lq = lq
            E("L_skip:")
        if q + 1 < NS:
            for v in STEPS[q + 1]:
                if LAST[v] == q + 1: free.append(slot[v])
    assert not todo and not half and not zq
    for x in soft(NK - 2, 1) + soft(NK - 1, 0) + soft(NK - 1, 1): E(x)
    if not fast:
        E(f"v_max3_f32 v{T0}, v{EV[0]}, v{EV[1]}, v{EV[2]}")
        for k in range(3, NK, 2): E(f"v_max3_f32 v{T0}, v{T0}, v{EV[k]}, v{EV[k+1]}")
        for ctl in ("quad_perm:[1,0,3,2]", "quad_perm:[2,3,0,1]", "row_half_mirror"):
            E(f"v_max_f32_dpp v{T0}, v{T0}, v{T0} {ctl} row_mask:0xf bank_mask:0xf")
        E(f"v_mov_b32 v{T1}, v{T0}\nv_permlane32_swap_b32 v{T0}, v{T1}\nv_max_f32 v{T0}, v{T0}, v{T1}")
        E(f"v_mov_b32 v{SUM}, 0\nv_mov_b32 v{ACC}, 0")
        for k in range(NK):
            E(f"""v_sub_f32 v{T1}, v{EV[k]}, v{T0}
            v_mul_f32 v{T1}, {f32(LOG2E)}, v{T1}
            v_exp_f32 v{T1}, v{T1}
            v_add_f32 v{SUM}, v{SUM}, v{T1}
            v_fmac_f32 v{ACC}, v{T1}, v{SV[k]}""")
    return segs + [E.take()]

def final(E, fast):
    E(f"""v_permlane32_swap_b32 v{ZS}, v{SUM}
    v_permlane32_swap_b32 v{AS}, v{ACC}
    v_add_f32 v{SUM}, v{ZS}, v{SUM}
    v_add_f32 v{ACC}, v{AS}, v{ACC}
    v_lshrrev_b32 v{T0}, 6, v0""")
    fill = [f"v_bfe_u32 v{T1}, v0, 3, 2", f"v_lshl_add_u32 v{T0}, v{T0}, 2, v{T1}", f"v_and_b32 v{T1}, 32, v0"]
    for ctl in ("quad_perm:[1,0,3,2]", "quad_perm:[2,3,0,1]", "row_half_mirror"):
        E(f"v_add_f32_dpp v{SUM}, v{SUM}, v{SUM} {ctl} row_mask:0xf bank_mask:0xf")
        E(f"v_add_f32_dpp v{ACC}, v{ACC}, v{ACC} {ctl} row_mask:0xf bank_mask:0xf")
        E(fill.pop(0))
    E(f"""v_rcp_f32 v{ZS}, v{SUM}
    s_lshl_b32 s18, s2, 6
    v_add3_u32 v{T0}, v{T0}, v{T1}, s18""")
    if fast:
        lo, hi = (127 - 64) << 23, (127 + 100) << 23
        E(f"""v_mul_f32 v{ACC}, {f32(2.0**-PSH)}, v{ACC}
        v_subrev_u32 v{SUM}, {lo}, v{SUM}
        v_mul_f32 v{ACC}, v{ACC}, v{ZS}
        v_cmp_lt_u32 vcc, {hi-lo}, v{SUM}
        s_movk_i32 s18, 0x207
        v_cmp_class_f32_e64 {sp(S_T)}, v{ACC}, s18
        v_lshlrev_b32 v{T0}, 1, v{T0}
        v_cvt_pk_bf16_f32 v{ACC}, v{ACC}, v{ACC}
        s_or_b64 {sp(S_T)}, vcc, {sp(S_T)}
        s_cbranch_scc1 L_slow
        s_cmp_lg_u32 s{S_FLAG}, 0
        s_cbranch_scc1 L_slow""")
    else:
        E(f"""v_mul_f32 v{ACC}, v{ACC}, v{ZS}
        v_lshlrev_b32 v{T0}, 1, v{T0}
        v_cvt_pk_bf16_f32 v{ACC}, v{ACC}, v{ACC}""")
    E(f"""s_mov_b32 exec_lo, 0x01010101
    s_mov_b32 exec_hi, 0x01010101
    global_store_short v{T0}, v{ACC}, s[16:17]{["", " sc0 sc1", " nt", " sc1"][OPT["stpol"]]}""")

def dump_stamps(E, n):
    if OPT["stamps"] == 3:
        E(f"""v_readfirstlane_b32 s18, v0
        s_sub_u32 s19, s42, s40
        s_lshl_b32 s19, s19, 3
        s_add_u32 s19, s19, 3000
        s_cmp_lg_u32 s18, {64*OPT.get('ampw',0)}
        s_cbranch_scc1 L_end
        s_cmp_{'lg' if OPT.get('ampwg',100) >= 0 else 'eq'}_u32 s2, {OPT.get('ampwg',100)}
        s_cbranch_scc1 L_end
        L_spin:
        s_memrealtime s[4:5]
        s_waitcnt lgkmcnt(0)
        s_sub_u32 s4, s4, s40
        s_cmp_lt_u32 s4, s19
        s_cbranch_scc1 L_spin""")
        return
    if OPT["stamps"] == 2:
        E("s_load_dwordx2 s[4:5], s[0:1], 72\ns_mov_b64 exec, 1\nv_mov_b32 v1, 0\ns_waitcnt lgkmcnt(0)")
        for k in range(n):
            E(f"v_mov_b32 v2, s{40+2*k}\nv_not_b32 v3, v2\nglobal_atomic_umax v1, v3, s[4:5] offset:{8*k}\nglobal_atomic_umax v1, v2, s[4:5] offset:{8*k+4}\ns_nop 1")
        return
    E("s_load_dwordx2 s[4:5], s[0:1], 80\ns_mov_b64 exec, 1\nv_lshrrev_b32 v1, 6, v0\ns_lshl_b32 s18, s2, 3\nv_add_u32 v1, s18, v1\nv_lshlrev_b32 v1, 7, v1\ns_waitcnt lgkmcnt(0)")
    for k in range(n):
        E(f"v_mov_b32 v2, s{40+2*k}\nv_mov_b32 v3, s{64+2*k}\nglobal_store_dwordx2 v1, v[2:3], s[4:5] offset:{8*k}\ns_nop 1")
    E("s_getreg_b32 s18, hwreg(HW_REG_HW_ID)\ns_getreg_b32 s19, hwreg(HW_REG_XCC_ID)\nv_mov_b32 v2, s18\nv_mov_b32 v3, s19\nglobal_store_dwordx2 v1, v[2:3], s[4:5] offset:120")

FLEX = ("v_add_f32", "v_exp_f32", "v_fmac_f32", "v_mul_f32")
def size(i):
    if i.kind == "none": return 0
    if i.kind in ("mfma", "ds", "vmem", "smem"): return 8
    if i.kind == "valu" and (i.mn.endswith("_e64") or i.mn.startswith(("v_pk_", "v_cvt_pk", "v_lshl_add"))): return 8
    assert i.mn in FLEX or i.mn in ("s_waitcnt", "s_nop", "s_setprio", "s_cbranch_scc1"), i.text
    return 4
def align8(block):
    out, run = [], []
    def flush():
        if len(run) % 2:
            fl = [k for k, x in enumerate(run) if x.mn in FLEX]
            if fl:
                k = fl[-1] if fl[-1] % 2 == 0 else None
                k = next((j for j in reversed(fl) if j % 2 == 0), None)
                if k is not None: run[k] = I(run[k].text.replace(run[k].mn, run[k].mn + "_e64", 1))
                else: run.append(I("s_nop 0"))
            else: run.append(I("s_nop 0"))
        out.extend(run); run.clear()
    for i in block:
        if size(i) == 4: run.append(i)
        else: flush(); out.append(i)
    flush()
    return out

def program(fast):
    E = Emitter(); sfx = "" if fast else "_x"
    prio = fast and OPT["prio"]
    first = range(4) if OPT["clate"] else range(7)
    if fast:
        E("s_cmp_ge_u32 s2, 256\ns_cbranch_scc1 L_end")
        stamp(E, 0)
        if prio: E("s_setprio 2")
        head(E, True)
        E(f"s_mov_b32 s{S_FLAG}, {OPT['force_slow']}\ns_mov_b32 s{S_JOB}, 0")
        E(f"s_cmp_ge_u32 s{S_W}, 256\ns_cbranch_scc1 L_y1")
        b0 = pad(E.take())
        E("s_waitcnt lgkmcnt(0)"); probe(E, 10); idx_loads(E, 0)
        o1 = pad(E.take(), [b0]); vq_idx = list(E.vq)
        E.vq = []
        E(f"L_y1:\ns_cmp_lg_u32 s{S_W}, 256\ns_cbranch_scc1 L_c1")
        y1a = E.take()
        param_loads(E, True); E("s_branch L_c1")
        y1b = pad(E.take(), [b0 + y1a]); vq_par = list(E.vq)
        E("L_c1:"); lane_consts(E, U_, Y4)
        E(f"v_and_b32 v{T2}, 63, v0\nv_lshlrev_b32 v{T2}, 4, v{T2}\nv_add_u32 v{T2}, {PAR}, v{T2}")
        E(f"s_cmp_ge_u32 s{S_W}, 256\ns_cbranch_scc1 L_y2")
        c1 = pad(E.take(), [o1, y1b])
        E(f"L_y2:\ns_cmp_lg_u32 s{S_W}, 256\ns_cbranch_scc1 L_y3")
        y2a = E.take()
        E.wait(r(W32, 8)); probe(E, 14)
        params(E, True); probe(E, 15)
        for k, b in enumerate(PARQ): E(f"ds_write_b128 v{T2}, {r(b,4)} offset:{1024*k}")
        y2b = pad(E.take(), [c1 + y2a])
        E("L_y3:\ns_waitcnt lgkmcnt(0)\ns_barrier"); idx_loads(E, 0); E("s_branch L_g")
        y3 = pad(E.take(), [y2b, c1])
        E.vq = vq_idx
        E("L_g:"); probe(E, 11); E.wait(f"v{I0}"); probe(E, 12); gathers0(E, first)
        if not OPT["clate"]: idx_loads(E, 1)
        stamp(E, 1)
        E(f"s_cmp_ge_u32 s{S_W}, 256\ns_cbranch_scc1 L_p")
        g = pad(E.take(), [c1, y3])
        bar = [I("s_barrier")]
        E("L_p:")
        for k, b in enumerate(PARQ): E(f"ds_read_b128 {r(b,4)}, v{T2} offset:{1024*k}")
        stamp(E, 2)
        conv(E, 0, True)
        if prio: E("s_setprio 1")
        stamp(E, 3)
        p = pad(E.take(), [g])
        layout_pre = b0 + o1 + c1 + g + bar + p
        layout_post = y1a + y1b + y2a + y2b + y3
        pres = [b0 + o1 + c1 + g + bar + p, b0 + y1a + y1b + c1 + y2a + y2b + y3 + g + p, b0 + y1a + c1 + y2a + y3 + g + p]
    else:
        E("L_slow:\ns_setprio 0")
        head(E, False); idx_loads(E, 0); idx_loads(E, 1); param_loads(E, False)
        lane_consts(E, U_, Y4)
        gathers0(E, range(7)); params(E, False)
        E(f"s_mov_b32 s{S_JOB}, 0")
        conv(E, 0, False)
        layout_pre = pad(E.take()); layout_post = []; pres = [layout_pre]
    segs = main(E, fast)
    tail = [I(f"s_cbranch_scc1 L_final{sfx}")]
    if fast: stamp(E, 4)
    if prio: E("s_setprio 2")
    E(f"s_mov_b32 s{S_JOB}, 1\nv_mov_b32 v{ZS}, v{SUM}\nv_mov_b32 v{AS}, v{ACC}")
    if not fast: gathers1(E)
    conv(E, 1, fast)
    if prio: E("s_setprio 0")
    if fast: stamp(E, 5)
    E(f"s_branch L_main{sfx}")
    mid = E.take()
    E.vq, E.lq = [], []
    E(f"L_final{sfx}:")
    if fast: stamp(E, 6)
    final(E, fast)
    if fast and OPT["stamps"]:
        stamp(E, 7); dump_stamps(E, 8)
    if fast: E("L_end:")
    E("s_endpgm")
    fin = E.take()
    al = align8 if fast and OPT["align"] else (lambda x: x)
    segs[0] = al(pad(segs[0], [layout_pre, pad(mid)]))
    if fast:
        segs[1] = al(pad(segs[1], [segs[0]]))
        segs[2] = al(pad(segs[2], [segs[0], segs[1]]))
        run0, run1 = segs[0] + segs[1] + segs[2] + tail, segs[0] + segs[2] + tail
    else:
        run0 = run1 = segs[0] + tail
    mid = pad(mid, [run0]); fin = pad(fin, [run0])
    for pre in pres: check_trace(pre + run0 + mid + run1 + fin)
    return layout_pre + [I(".p2align 3"), I(f"L_main{sfx}:")] + run0 + mid + fin + layout_post

HEAD = open("cdna_kernels/" + NAME + ".s.ref").read().split("; Override launch")[0]
out = HEAD + f"""; @launch grid=(256,1,1) block=(512,1,1) lds={PAR+10240}
; Generated by gen/gen.py.
.amdgcn_target "amdgcn-amd-amdhsa--gfx950"
.text
.globl {NAME}_kernel
.p2align 8
.type {NAME}_kernel,@function
{NAME}_kernel:
"""
fastp, slowp = program(True), program(False)
for i in fastp + slowp:
    out += (i.text if i.kind == "none" else "    " + i.text) + "\n"
out += f""".section .rodata,"a"
.p2align 6
.amdhsa_kernel {NAME}_kernel
  .amdhsa_next_free_vgpr 256
  .amdhsa_next_free_sgpr 96
  .amdhsa_accum_offset 256
  .amdhsa_group_segment_fixed_size 0
  .amdhsa_kernarg_size 88
  .amdhsa_user_sgpr_count 2
  .amdhsa_user_sgpr_kernarg_segment_ptr 1
  .amdhsa_system_sgpr_workgroup_id_x 1
  .amdhsa_float_denorm_mode_32 3
.end_amdhsa_kernel
"""
open(sys.argv[1], "w").write(out)
nn = sum(int(i.ops[0]) + 1 for i in fastp if i.mn == "s_nop")
print("fast instrs", len(fastp), "nop states", nn, "slow instrs", len(slowp))
```

```python
import sys, struct, math
from asmlib import *

NAME = "standalone__factorization_afm__recsys"
OPT = dict(stamps=0, force_slow=0, align=1, prio=1, nt=1, cq=7, clate=0, jq=14, stpol=0, cpf=0, ipf=0, gnt=0)
for a in sys.argv[2:]:
    k, v = a.split("="); OPT[k] = int(v)

def f32(x): return "0x%08x" % struct.unpack("<I", struct.pack("<f", x))[0]
def r(b, n=1): return f"v{b}" if n == 1 else f"v[{b}:{b+n-1}]"

IDX, R0, R1, R3, R4, RT2, RT3, RB, RU, RV, RZ, RM, RW = range(1, 14)
SUM, ACC, T0, T1, ZS, AS, CH16, T2 = range(14, 22)
OFF1, INF, C, D0, W, ALS, AH, AID, P0, Q, SD, RAW, F = 22, 28, 32, 48, 80, 88, 96, 104, 112, 128, 136, 148, 172
NF = 9
SPARE = 244
CH, WLDS = 2080, 8320
PAR = 8 * WLDS
LOG2E = math.log2(math.e)
PSH = 6
S_MPAR, S_MT, S_MB, S_M0, S_M1, S_FLAG, S_JOB, S_T, S_W = 24, 26, 28, 30, 32, 34, 35, 36, 38
def sp(b): return f"s[{b}:{b+1}]"

VERT = {}
for nm, o in (("A", 0), ("B", 1), ("C", 2)):
    for x, reg in ((0, R0), (1, R1), (3, R3)):
        VERT[f"{nm}{x}"] = (reg, 512 * o, (lambda c, o=o, x=x: (o, (x + c) % 8)))
VERT["I1"] = (RB, 1536, lambda c: (3, 0))
VERT["I2"] = (RB, 1552, lambda c: (3, 1))
VERT["T1"] = (R4, 0, lambda c: (0, (c + 4) % 8))
VERT["T2"] = (RT2, 512, lambda c: (2 if c >= 4 else 1, (c + 4) % 8))
VERT["T3"] = (RT3, 1024, lambda c: (1 if c >= 4 else 2, (c + 4) % 8))
VERT["U"] = (RU, 0, lambda c: (3, 0) if c >= 4 else (0, c))
VERT["V"] = (RV, 0, lambda c: (3, 1) if c >= 4 else (0, c + 4))
STEPS = """A0A1 A0A3 A1A3 A0B0 A1B0 A3B0 A0B1 A3B1 B0B1 A0B3 A1B3 B0B3 B1B3
A0C3 A1C3 B0C3 B1C3 A1C0 B1C0 C0C3 A0C0 B0C0 A3C0 B3C0 C1C3 A3C1 B3C1 A0C1 B0C1 C0C1
I1A0 I1B0 I1C0 I2A0 I2B0 I2C0 T1B0 T1C0 T2B0 T3C0""".split()
STEPS = [(s[:2], s[2:]) for s in STEPS] + [("U", "V")]
NS = len(STEPS)
seen = set()
for q, (a, b) in enumerate(STEPS):
    for c in range(8):
        if q == NS - 1 and c >= 5: continue
        e = frozenset((VERT[a][2](c), VERT[b][2](c)))
        assert len(e) == 2 and e not in seen
        seen.add(e)
assert len(seen) == 325 and NS == 41
FIRST = {}; LAST = {}
for q, ab in enumerate(STEPS):
    for v in ab:
        FIRST.setdefault(v, q); LAST[v] = q
NK = (NS + 1) // 2

def probe(E, n):
    if OPT["stamps"] == 3 and OPT["probe"] == n:
        lq = [x for x in E.lq if x.kind == "ds"]
        E("s_memrealtime s[42:43]\ns_waitcnt lgkmcnt(0)")
        E.lq = lq
def stamp(E, n):
    if OPT["stamps"] == 3:
        if n == 0: E("s_memrealtime s[40:41]\ns_mov_b32 s42, 0")
        probe(E, n)
        return
    if OPT["stamps"] == 4:
        if n in (0, 7): E(f"s_memrealtime s[{40+2*n}:{41+2*n}]")
        return
    if OPT["stamps"]:
        E(f"s_memrealtime s[{40+2*n}:{41+2*n}]")
        E(f"s_memtime s[{64+2*n}:{65+2*n}]")
        E("s_waitcnt lgkmcnt(0)")

I0 = P0
GI = INF
W32, BB, W16, HB, PB, XX, YY, TM = F, F + 8, F + 16, F + 24, F + 28, F + 32, F + 36, F + 40

U_, A_, VA, VB, X8, Y4, H16, K16, AW, AW16 = range(TM, TM + 10)
def head(E, first):
    if first:
        E(f"""s_load_dwordx2 s[4:5], s[0:1], 0
        s_load_dwordx2 s[20:21], s[0:1], 8
        s_load_dwordx8 s[8:15], s[0:1], 32
        s_load_dwordx2 s[16:17], s[0:1], 64
        v_readfirstlane_b32 s{S_W}, v0""")
    E(f"""v_lshrrev_b32 v{A_}, 4, v0
    s_mul_i32 s18, s2, 6656
    v_bfe_u32 v{U_}, v0, 2, 2
    v_mul_u32_u24 v{A_}, 104, v{A_}
    s_movk_i32 s19, 416
    v_add_u32 v{A_}, s18, v{A_}
    v_and_b32 v{X8}, 8, v0
    v_mad_u32_u24 v{VA}, v{U_}, 24, v{A_}
    v_and_b32 v{Y4}, 4, v0
    v_mad_u32_u24 v{VB}, v{X8}, s19, v{A_}
    v_add_u32 v{VB}, v{VB}, v{Y4}""")
    if first:
        E("""s_mov_b32 s22, 6400000
        s_mov_b32 s23, 0x00020000""")

def idx_loads(E, job):
    nt = " nt" if OPT["nt"] else ""
    if job == 0:
        E(f"""global_load_dwordx4 {r(I0,4)}, v{VA}, s[4:5]{nt}
        global_load_dwordx2 {r(I0+4,2)}, v{VA}, s[4:5] offset:16{nt}
        global_load_dword v{I0+6}, v{VB}, s[4:5] offset:96{nt}""")
    else:
        E(f"""global_load_dwordx4 {r(OFF1,4)}, v{VA}, s[4:5] offset:3328{nt}
        global_load_dwordx2 {r(OFF1+4,2)}, v{VA}, s[4:5] offset:3344{nt}""")

def param_loads(E, fast):
    E(f"""v_lshrrev_b32 v{H16}, 1, v0
    v_and_b32 v{AW}, 19, v0
    v_and_b32 v{H16}, 16, v{H16}
    v_and_b32 v{K16}, 48, v0
    v_lshl_add_u32 v{AW}, v{AW}, 6, v{H16}
    v_and_b32 v{AW16}, 14, v0
    v_lshl_add_u32 v{AW}, v{Y4}, 7, v{AW}
    v_lshl_add_u32 v{AW16}, v{AW16}, 7, v{K16}
    v_lshl_add_u32 v{AW}, v{X8}, 5, v{AW}
    v_and_b32 v{A_}, 1, v0
    v_lshl_add_u32 v{AW16}, v{A_}, 6, v{AW16}""")
    if fast: E("s_waitcnt lgkmcnt(0)")
    E(f"""global_load_dwordx4 {r(W32,4)}, v{AW}, s[8:9]
    global_load_dwordx4 {r(W32+4,4)}, v{AW}, s[8:9] offset:32
    global_load_dwordx4 {r(BB,4)}, v{H16}, s[10:11]
    global_load_dwordx4 {r(BB+4,4)}, v{H16}, s[10:11] offset:32
    global_load_dwordx4 {r(HB,4)}, v{K16}, s[12:13]
    global_load_dwordx4 {r(PB,4)}, v{K16}, s[14:15]""")
    if fast:
        E(f"""global_load_dwordx4 {r(W16,4)}, v{AW16}, s[8:9]
        global_load_dwordx4 {r(W16+4,4)}, v{AW16}, s[8:9] offset:128""")

def lane_consts(E, u, y4):
    t, l16, one = TM + 10, TM + 11, TM + 12
    z = D0
    E(f"""v_lshrrev_b32 v{t}, 6, v0
    s_movk_i32 s18, {CH}
    v_mul_u32_u24 v{RZ}, {WLDS}, v{t}
    v_and_b32 v{t}, 3, v0
    v_lshlrev_b32 v{CH16}, 4, v{t}
    v_mad_u32_u24 v{RW}, v{t}, s18, v{RZ}
    v_bfe_u32 v{t}, v0, 4, 2
    v_lshl_add_u32 v{RW}, v{u}, 4, v{RW}
    v_lshl_add_u32 v{RW}, v{t}, 7, v{RW}
    v_bfe_u32 v{t}, v0, 5, 1
    v_mad_u32_u24 v{RB}, v{t}, s18, v{RZ}
    v_and_b32 v{t}, 24, v0
    v_and_b32 v{l16}, 7, v0
    v_lshl_add_u32 v{RB}, v{t}, 4, v{RB}
    v_lshl_add_u32 v{R0}, v{l16}, 4, v{RB}
    v_xor_b32 v{t}, 4, v{l16}
    v_lshl_add_u32 v{R4}, v{t}, 4, v{RB}
    v_add_u32 v{t}, 1, v{l16}
    v_and_b32 v{t}, 7, v{t}
    v_lshl_add_u32 v{R1}, v{t}, 4, v{RB}
    v_add_u32 v{t}, 3, v{l16}
    v_and_b32 v{t}, 7, v{t}
    v_lshl_add_u32 v{R3}, v{t}, 4, v{RB}
    v_lshlrev_b32 v{t}, 7, v{y4}
    s_mov_b32 s{S_MB}, 0xf0f0f0f0
    v_add_u32 v{RT2}, v{R4}, v{t}
    s_mov_b32 s{S_MB+1}, s{S_MB}
    v_sub_u32 v{RT3}, v{R4}, v{t}
    v_add_u32 v{t}, 1536, v{RB}
    s_mov_b32 s{S_M0}, 0xe0e0e0e0
    v_cndmask_b32_e64 v{RU}, v{R0}, v{t}, {sp(S_MB)}
    v_add_u32 v{t}, 16, v{t}
    s_mov_b32 s{S_M0+1}, -1
    v_cndmask_b32_e64 v{RV}, v{R4}, v{t}, {sp(S_MB)}
    v_add_u32 v{t}, 16, v{RZ}
    v_mov_b32 v{z}, 0xff800000
    v_cndmask_b32_e64 v{RM}, v{RZ}, v{t}, {sp(S_M0)}
    v_cndmask_b32_e64 v{z}, 0, v{z}, {sp(S_M0)}
    v_mov_b32 v{z+1}, 0
    v_mov_b64 {r(z+2,2)}, 0
    s_mov_b32 s{S_MPAR}, 0xaaaaaaaa
    ds_write_b128 v{RM}, {r(z,4)} offset:2048
    s_mov_b32 s{S_MPAR+1}, s{S_MPAR}
    v_mov_b32 v{t}, 0x4444
    v_mov_b32 v{IDX}, 0xeeee
    s_mov_b32 s{S_MT}, 0xcccccccc
    v_cndmask_b32_e64 v{IDX}, v{t}, v{IDX}, {sp(S_MPAR)}
    v_mov_b32 v{t}, 0x3f80
    s_mov_b32 s{S_MT+1}, s{S_MT}
    v_cndmask_b32_e64 v{one}, v{t}, 1.0, {sp(S_MPAR)}
    s_mov_b32 s{S_M0}, 3
    s_mov_b32 s{S_M0+1}, 48""")
    for R in range(8):
        sh = 8 * (R // 2) + 2 * (R % 2)
        m = S_M0
        if sh:
            m = S_M1 if R % 2 else S_T
            E(f"s_lshl_b64 {sp(m)}, {sp(S_M0)}, {sh}")
        E(f"v_cndmask_b32_e64 v{AID+R}, 0, v{one}, {sp(m)}")

def gather(E, idx, dst, lvl=3):
    E(f"buffer_load_dwordx4 {r(dst,4)}, v{idx}, s[20:23], 0 offen" + (" nt" if OPT["gnt"] >= lvl else ""))

def gathers0(E, which):
    for t in which:
        i, d = (I0 + t, RAW + 4 * t) if t < 6 else (I0 + 6, GI)
        E.wait(f"v{i}")
        E(f"v_lshl_add_u32 v{i}, v{i}, 6, v{CH16}")
        gather(E, i, d, 1 if t < 4 else 2)
def gathers1(E):
    E.wait(r(OFF1, 6))
    for t in range(6):
        E(f"v_lshl_add_u32 v{OFF1+t}, v{OFF1+t}, 6, v{CH16}")
        gather(E, OFF1 + t, RAW + 4 * t)
PARQ = [W, W+4, C, C+4, C+8, C+12, ALS, ALS+4, AH, AH+4]

def params(E, fast):
    D1 = D0 + 16
    E.wait(r(W32, 8))
    E(f"v_mfma_f32_32x32x16_bf16 {r(D1,16)}, {r(W32,4)}, {r(AID,4)}, 0")
    E(f"v_mfma_f32_32x32x16_bf16 {r(D1,16)}, {r(W32+4,4)}, {r(AID+4,4)}, {r(D1,16)}")
    E.wait(r(BB, 8))
    E(f"v_mfma_f32_32x32x16_bf16 {r(C,16)}, {r(AID,4)}, {r(BB,4)}, 0")
    E(f"v_mfma_f32_32x32x16_bf16 {r(C,16)}, {r(AID+4,4)}, {r(BB+4,4)}, {r(C,16)}")
    E.wait(r(HB, 8))
    vh, vp, pf, kk = TM + 14, TM + 16, TM + 18, TM + 22
    for j in range(2):
        E(f"v_cndmask_b32_e64 v{vh+j}, v{HB+2*j}, v{HB+2*j+1}, {sp(S_MPAR)}")
        E(f"v_cndmask_b32_e64 v{vp+j}, v{PB+2*j}, v{PB+2*j+1}, {sp(S_MPAR)}")
    if fast:
        E.wait(r(W16, 8))
        E(f"v_mfma_f32_16x16x32_bf16 {r(XX,4)}, {r(W16,4)}, {r(HB,4)}, 0")
        E(f"v_mfma_f32_16x16x32_bf16 {r(YY,4)}, {r(W16+4,4)}, {r(HB,4)}, 0")
    E(f"s_mov_b32 s{S_M0}, 0x00030003\ns_mov_b32 s{S_M0+1}, s{S_M0}")
    for g in range(4):
        m = S_M0
        if g:
            m = S_M1 if g % 2 else S_T
            E(f"s_lshl_b64 {sp(m)}, {sp(S_M0)}, {4*g}")
        for j in range(2):
            E(f"v_cndmask_b32_e64 v{AH+2*g+j}, 0, v{vh+j}, {sp(m)}")
    if fast:
        E(f"s_mov_b32 s18, {f32(LOG2E/2)}")
        E(f"s_mov_b32 s19, {f32(2.0**-7)}")
        for j in range(2):
            E(f"v_lshlrev_b32 v{pf+2*j}, 16, v{vp+j}")
            E(f"v_and_b32 v{pf+2*j+1}, 0xffff0000, v{vp+j}")
        E(f"v_mov_b32 v{kk}, s18")
        E(f"v_mov_b32 v{kk+1}, {f32(2.0**PSH)}")
        E(f"v_cmp_le_f32_e64 vcc, s19, |v{D1}|")
        E(f"v_cndmask_b32_e64 v{kk+1}, v{kk}, v{kk+1}, {sp(S_MT)}")
        for k in range(8):
            E(f"v_mul_f32 v{D1+2*k}, v{kk}, v{D1+2*k}")
            E(f"v_mul_f32 v{D1+2*k+1}, v{kk}, v{D1+2*k+1}")
            if k == 0:
                E(f"s_cmp_eq_u64 vcc, 0\ns_cselect_b32 s18, -1, s18")
            E(f"v_cvt_pk_f16_f32 v{W+k}, v{D1+2*k}, v{D1+2*k+1}")
        for k in range(4):
            E(f"v_cndmask_b32_e64 v{XX+k}, v{XX+k}, v{YY+k}, {sp(S_MPAR)}")
            E(f"v_cndmask_b32_e64 v{XX+k}, v{XX+k}, v{pf+k}, {sp(S_MT)}")
            E(f"v_mul_f32 v{XX+k}, v{kk+1}, v{XX+k}")
        E(f"v_cmp_le_f32_e64 vcc, s19, |v{XX}|")
        for j in range(2):
            E(f"v_cvt_pk_f16_f32 v{vp+j}, v{XX+2*j}, v{XX+2*j+1}")
        E(f"""s_and_b64 {sp(S_T)}, vcc, {sp(S_MT)}
        s_cselect_b32 s18, s18, -1
        s_andn2_b64 {sp(S_T)}, vcc, {sp(S_MT)}
        s_cselect_b32 s18, s18, -1""")
        for k in range(16):
            E(f"v_mul_f32 v{C+k}, s18, v{C+k}")
    else:
        for k in range(8):
            E(f"v_cvt_pk_bf16_f32 v{W+k}, v{D1+2*k}, v{D1+2*k+1}")
    E(f"s_mov_b32 s{S_M0}, {'0x000f000f' if fast else '0x000c000c'}\ns_mov_b32 s{S_M0+1}, s{S_M0}")
    for g in range(4):
        m = S_M0
        if g:
            m = S_M1 if g % 2 else S_T
            E(f"s_lshl_b64 {sp(m)}, {sp(S_M0)}, {4*g}")
        for j in range(2):
            E(f"v_cndmask_b32_e64 v{ALS+2*g+j}, 0, v{vp+j}, {sp(m)}")

PRE = ["A0", "A1", "A3", "B0"]
def slot_reg(s): return F + 8 * s
def rd(E, v, s, t):
    reg, off, _ = VERT[v]
    E(f"ds_read_b128 {r(slot_reg(s)+4*t,4)}, v{reg} offset:{off + 2*CH*t}")
def zinit(E, k):
    E(f"ds_read_b128 {r(SD+4*(k%3),4)}, v{RM if k == NK-1 else RZ} offset:2048")

def mm(E, d, g, hi):
    E.wait(r(g, 4))
    E(f"v_mfma_f32_32x32x16_bf16 {r(d,16)}, {r(AID+4*hi,4)}, {r(g,4)}, {r(d,16) if hi else 0}")
def cv(dst, d, ks):
    return [f"v_cvt_pk_f16_f32 v{dst+k}, v{d+2*k}, v{d+2*k+1}" for k in ks]
def wr(E, src, off):
    E.wait(r(src, 4))
    E(f"ds_write_b128 v{RW}, {r(src,4)} offset:{off}")

def conv(E, job, fast):
    D1 = D0 + 16; P1 = P0 + 8
    if fast:
        if job: wr(E, INF, 1536 - 32)
        mm(E, D0, RAW, 0); mm(E, D0, RAW+4, 1)
        if job == 0: probe(E, 13)
        if job == 0 and OPT["clate"]:
            gathers0(E, (4, 5, 6)); idx_loads(E, 1)
        mm(E, D1, RAW+8, 0); mm(E, D1, RAW+12, 1)
        E(f"s_mov_b32 s19, {f32(0.125)}")
        E(f"v_cmp_le_f32_e64 vcc, s19, |v{D0}|")
        E("\n".join(cv(P1, D0, range(4)))); wr(E, P1, 0)
        E("\n".join(cv(P1, D0, range(4, 8)))); wr(E, P1+4, 64)
    else:
        wr(E, RAW, 0); wr(E, RAW+4, 64)
    for s, v in enumerate(PRE[:3]):
        rd(E, v, s, 0); rd(E, v, s, 1)
    zinit(E, 0)
    if fast:
        E("\n".join(cv(Q, D1, range(4)))); wr(E, Q, 512)
        E(f"""s_and_b32 s18, vcc_lo, 0xffff
        s_cselect_b32 s{S_FLAG}, s{S_FLAG}, 1
        s_lshr_b32 s18, vcc_lo, 16
        s_cselect_b32 s{S_FLAG}, s{S_FLAG}, 1""")
        E("\n".join(cv(Q, D1, range(4, 8)))); wr(E, Q+4, 576)
        E(f"""s_and_b32 s18, vcc_hi, 0xffff
        s_cselect_b32 s{S_FLAG}, s{S_FLAG}, 1
        s_lshr_b32 s18, vcc_hi, 16
        s_cselect_b32 s{S_FLAG}, s{S_FLAG}, 1""")
    else:
        wr(E, RAW+8, 512); wr(E, RAW+12, 576)
        wr(E, INF, 1536 - 32 * job)
        wr(E, RAW+16, 1024); wr(E, RAW+20, 1088)
    rd(E, PRE[3], 3, 0); rd(E, PRE[3], 3, 1)
    E(f"s_cmp_lg_u32 s{S_JOB}, 0")

EV = [RAW + k for k in range(21)]
SV = [RAW+21, RAW+22, RAW+23] + [AID + k for k in range(8)] + [SPARE + k for k in range(10)]
def main(E, fast):
    slot = {v: s for s, v in enumerate(PRE)}
    free = list(range(len(PRE), NF))
    todo = sorted([v for v in VERT if v not in PRE], key=lambda v: FIRST[v])
    half = []
    zq = list(range(1, NK))
    zfree = {1: -9, 2: -9}
    ty = "f16" if fast else "bf16"
    def pk(q, ks):
        if not 0 <= q < NS: return []
        a, b = (slot_reg(slot[v]) for v in STEPS[q]); P = P0 + 8 * (q % 2)
        if fast: return [f"v_pk_mul_f16 v{P+k}, v{a+k}, v{b+k}" for k in ks]
        return [f"""v_lshlrev_b32 v{T0}, 16, v{a+k}
                v_lshlrev_b32 v{T1}, 16, v{b+k}
                v_mul_f32 v{T0}, v{T0}, v{T1}
                v_and_b32 v{T1}, 0xffff0000, v{a+k}
                v_and_b32 v{T2}, 0xffff0000, v{b+k}
                v_mul_f32 v{T1}, v{T1}, v{T2}
                v_cvt_pk_bf16_f32 v{P+k}, v{T0}, v{T1}""" for k in ks]
    def cvt(q, ks):
        if not 0 <= q < NS: return []
        D = D0 + 16 * (q % 2)
        if fast: return [f"v_cvt_pk_bf16_f32 v{Q+k}, |v{D+2*k}|, |v{D+2*k+1}|" for k in ks]
        return [f"v_cvt_pk_bf16_f32 v{Q+k}, v{D+2*k}, v{D+2*k+1}\nv_pk_max_i16 v{Q+k}, v{Q+k}, 0" for k in ks]
    CQ, JQ = OPT["cq"], OPT["jq"]
    DC = slot_reg(NF - 2)
    ready = {v: (CQ + 3 if v[0] == "C" or v in ("T2", "T3") else JQ + 1 if v[0] in "IUV" else -9) if fast else -9 for v in VERT}
    held = [NF - 2, NF - 1] if fast else []
    free = [x for x in free if x not in held]
    wq = []
    def shadow(q):
        shadow_read(q)
        if wq: wr(E, *wq.pop(0))
    def shadow_read(q):
        cand = []
        if zq and zfree.get(zq[0], 99) <= q: cand.append((2 * zq[0] - 0.5, "z"))
        if half: cand.append((FIRST[half[0]] - 1, "h"))
        elif todo and free and ready[todo[0]] <= q: cand.append((FIRST[todo[0]] - 1, "f"))
        if not cand: return
        what = min(cand)[1]
        if what == "z": zinit(E, zq.pop(0))
        elif what == "h":
            v = half.pop(0); rd(E, v, slot[v], 1)
        else:
            v = todo.pop(0); slot[v] = free.pop(0); rd(E, v, slot[v], 0); half.append(v)
    def soft(k, part):
        if not 0 <= k < NK: return []
        sd = SD + 4 * (k % 3)
        if not fast:
            return [f"v_add_f32 v{EV[k]}, v{sd}, v{sd+1}", f"v_add_f32 v{SV[k]}, v{sd+2}, v{sd+3}"] if part == 0 else []
        w = SUM if k == 0 else T0
        if part == 0: return [f"v_add_f32 v{T0}, v{sd}, v{sd+1}", f"v_exp_f32 v{w}, v{T0}"]
        if k == 0: return [f"v_mul_f32 v{ACC}, v{w}, v{sd+2}", f"v_fmac_f32 v{ACC}, v{w}, v{sd+3}"]
        return [f"v_add_f32 v{SUM}, v{SUM}, v{w}", f"v_fmac_f32 v{ACC}, v{w}, v{sd+2}", f"v_fmac_f32 v{ACC}, v{w}, v{sd+3}"]
    def out(L):
        for x in L: E(x)
    E.wait(r(slot_reg(0), 16))
    out(pk(0, range(8)))
    segs = []
    for q in range(NS + 1):
        live = q < NS
        P = P0 + 8 * (q % 2); D = D0 + 16 * (q % 2)
        so = soft((q - 3) // 2, 0) if q % 2 else soft((q - 4) // 2, 1)
        extra = fast and q in (CQ, CQ + 1)
        if live: E(f"v_mfma_f32_32x32x16_{ty} {r(D,16)}, {r(W,4)}, {r(P,4)}, {r(C,16)}")
        out(cvt(q - 1, range(6)))
        if live: E(f"v_mfma_f32_32x32x16_{ty} {r(D,16)}, {r(W+4,4)}, {r(P+4,4)}, {r(D,16)}")
        nxt = [r(slot_reg(slot[v]), 8) for v in STEPS[q + 1]] if q + 1 < NS else []
        assert not live or q // 2 not in zq
        assert q + 1 >= NS or not set(STEPS[q + 1]) & set(half)
        if live: E.wait(r(SD + 4 * ((q // 2) % 3), 4), *nxt)
        if so: E(so.pop(0))
        out(cvt(q - 1, range(6, 8)))
        p = pk(q + 1, range(8))
        n1, n2 = (3, 4) if extra else (4, 6)
        out(p[:n1])
        if fast and q == CQ + 2:
            out(cv(RAW, DC, range(4))); wq.append((RAW, 1024))
        if q % 2 == 0 and not extra:
            out(so); so = []
        if q % 2 == 0 and q >= 4: zfree[(q - 4) // 2 + 3] = q + extra
        if live: E(f"v_smfmac_f32_16x16x64_{ty} {r(SD+4*((q//2)%3),4)}, {r(ALS+4*(q%2),4)}, {r(P,8)}, v{IDX}")
        shadow(q)
        out(p[n1:n2])
        if fast and q == CQ + 2:
            out(cv(RAW, DC, range(4, 8))); wq.append((RAW + 4, 1088))
            free += held
        if q >= 1: E(f"v_smfmac_f32_16x16x64_bf16 {r(SD+4*(((q-1)//2)%3),4)}, {r(AH+4*((q-1)%2),4)}, {r(Q,8)}, v{IDX}")
        if extra:
            if q == CQ: E("s_waitcnt vmcnt(0)")
            else: shadow(q)
            out(p[n2:n2+1]); n2 += 1
            mm(E, DC, RAW + 16 + 4 * (q - CQ), q - CQ)
        else: shadow(q)
        out(p[n2:]); out(so)
        if fast and q == JQ:
            E("s_cbranch_scc1 L_skip")
            segs.append(E.take()); lq = list(E.lq)
            mm(E, RAW, GI, 0)
            for t in range(6): E(f"v_lshl_add_u32 v{OFF1+t}, v{OFF1+t}, 6, v{CH16}")
            for t in (4, 5): gather(E, OFF1 + t, RAW + 4 * t)
            out(cv(INF, RAW, range(4)))
            for t in range(4): gather(E, OFF1 + t, RAW + 4 * t)
            wr(E, INF, 1536)
            segs.append(E.take()); E.lq = lq
            E("L_skip:")
        if q + 1 < NS:
            for v in STEPS[q + 1]:
                if LAST[v] == q + 1: free.append(slot[v])
    assert not todo and not half and not zq
    for x in soft(NK - 2, 1) + soft(NK - 1, 0) + soft(NK - 1, 1): E(x)
    if not fast:
        E(f"v_max3_f32 v{T0}, v{EV[0]}, v{EV[1]}, v{EV[2]}")
        for k in range(3, NK, 2): E(f"v_max3_f32 v{T0}, v{T0}, v{EV[k]}, v{EV[k+1]}")
        for ctl in ("quad_perm:[1,0,3,2]", "quad_perm:[2,3,0,1]", "row_half_mirror"):
            E(f"v_max_f32_dpp v{T0}, v{T0}, v{T0} {ctl} row_mask:0xf bank_mask:0xf")
        E(f"v_mov_b32 v{T1}, v{T0}\nv_permlane32_swap_b32 v{T0}, v{T1}\nv_max_f32 v{T0}, v{T0}, v{T1}")
        E(f"v_mov_b32 v{SUM}, 0\nv_mov_b32 v{ACC}, 0")
        for k in range(NK):
            E(f"""v_sub_f32 v{T1}, v{EV[k]}, v{T0}
            v_mul_f32 v{T1}, {f32(LOG2E)}, v{T1}
            v_exp_f32 v{T1}, v{T1}
            v_add_f32 v{SUM}, v{SUM}, v{T1}
            v_fmac_f32 v{ACC}, v{T1}, v{SV[k]}""")
    return segs + [E.take()]

def final(E, fast):
    E(f"""v_permlane32_swap_b32 v{ZS}, v{SUM}
    v_permlane32_swap_b32 v{AS}, v{ACC}
    v_add_f32 v{SUM}, v{ZS}, v{SUM}
    v_add_f32 v{ACC}, v{AS}, v{ACC}
    v_lshrrev_b32 v{T0}, 6, v0""")
    fill = [f"v_bfe_u32 v{T1}, v0, 3, 2", f"v_lshl_add_u32 v{T0}, v{T0}, 2, v{T1}", f"v_and_b32 v{T1}, 32, v0"]
    for ctl in ("quad_perm:[1,0,3,2]", "quad_perm:[2,3,0,1]", "row_half_mirror"):
        E(f"v_add_f32_dpp v{SUM}, v{SUM}, v{SUM} {ctl} row_mask:0xf bank_mask:0xf")
        E(f"v_add_f32_dpp v{ACC}, v{ACC}, v{ACC} {ctl} row_mask:0xf bank_mask:0xf")
        E(fill.pop(0))
    E(f"""v_rcp_f32 v{ZS}, v{SUM}
    s_lshl_b32 s18, s2, 6
    v_add3_u32 v{T0}, v{T0}, v{T1}, s18""")
    if fast:
        lo, hi = (127 - 64) << 23, (127 + 100) << 23
        E(f"""v_mul_f32 v{ACC}, {f32(2.0**-PSH)}, v{ACC}
        v_subrev_u32 v{SUM}, {lo}, v{SUM}
        v_mul_f32 v{ACC}, v{ACC}, v{ZS}
        v_cmp_lt_u32 vcc, {hi-lo}, v{SUM}
        s_movk_i32 s18, 0x207
        v_cmp_class_f32_e64 {sp(S_T)}, v{ACC}, s18
        v_lshlrev_b32 v{T0}, 1, v{T0}
        v_cvt_pk_bf16_f32 v{ACC}, v{ACC}, v{ACC}
        s_or_b64 {sp(S_T)}, vcc, {sp(S_T)}
        s_cbranch_scc1 L_slow
        s_cmp_lg_u32 s{S_FLAG}, 0
        s_cbranch_scc1 L_slow""")
    else:
        E(f"""v_mul_f32 v{ACC}, v{ACC}, v{ZS}
        v_lshlrev_b32 v{T0}, 1, v{T0}
        v_cvt_pk_bf16_f32 v{ACC}, v{ACC}, v{ACC}""")
    E(f"""s_mov_b32 exec_lo, 0x01010101
    s_mov_b32 exec_hi, 0x01010101
    global_store_short v{T0}, v{ACC}, s[16:17]{["", " sc0 sc1", " nt", " sc1"][OPT["stpol"]]}""")

def dump_stamps(E, n):
    if OPT["stamps"] == 3:
        E(f"""v_readfirstlane_b32 s18, v0
        s_sub_u32 s19, s42, s40
        s_lshl_b32 s19, s19, 3
        s_add_u32 s19, s19, 3000
        s_cmp_lg_u32 s18, {64*OPT.get('ampw',0)}
        s_cbranch_scc1 L_end
        s_cmp_{'lg' if OPT.get('ampwg',100) >= 0 else 'eq'}_u32 s2, {OPT.get('ampwg',100)}
        s_cbranch_scc1 L_end
        L_spin:
        s_memrealtime s[4:5]
        s_waitcnt lgkmcnt(0)
        s_sub_u32 s4, s4, s40
        s_cmp_lt_u32 s4, s19
        s_cbranch_scc1 L_spin""")
        return
    if OPT["stamps"] == 2:
        E("s_load_dwordx2 s[4:5], s[0:1], 72\ns_mov_b64 exec, 1\nv_mov_b32 v1, 0\ns_waitcnt lgkmcnt(0)")
        for k in range(n):
            E(f"v_mov_b32 v2, s{40+2*k}\nv_not_b32 v3, v2\nglobal_atomic_umax v1, v3, s[4:5] offset:{8*k}\nglobal_atomic_umax v1, v2, s[4:5] offset:{8*k+4}\ns_nop 1")
        return
    E("s_load_dwordx2 s[4:5], s[0:1], 80\ns_mov_b64 exec, 1\nv_lshrrev_b32 v1, 6, v0\ns_lshl_b32 s18, s2, 3\nv_add_u32 v1, s18, v1\nv_lshlrev_b32 v1, 7, v1\ns_waitcnt lgkmcnt(0)")
    for k in (range(n) if OPT["stamps"] != 4 else (0, 7)):
        E(f"v_mov_b32 v2, s{40+2*k}\nv_mov_b32 v3, s{64+2*k}\nglobal_store_dwordx2 v1, v[2:3], s[4:5] offset:{8*k}\ns_nop 1")
    E("s_getreg_b32 s18, hwreg(HW_REG_HW_ID)\ns_getreg_b32 s19, hwreg(HW_REG_XCC_ID)\nv_mov_b32 v2, s18\nv_mov_b32 v3, s19\nglobal_store_dwordx2 v1, v[2:3], s[4:5] offset:120")

FLEX = ("v_add_f32", "v_exp_f32", "v_fmac_f32", "v_mul_f32")
def size(i):
    if i.kind == "none": return 0
    if i.kind in ("mfma", "ds", "vmem", "smem"): return 8
    if i.kind == "valu" and (i.mn.endswith("_e64") or i.mn.startswith(("v_pk_", "v_cvt_pk", "v_lshl_add"))): return 8
    assert i.mn in FLEX or i.mn in ("s_waitcnt", "s_nop", "s_setprio", "s_cbranch_scc1"), i.text
    return 4
def align8(block):
    out, run = [], []
    def flush():
        if len(run) % 2:
            fl = [k for k, x in enumerate(run) if x.mn in FLEX]
            if fl:
                k = fl[-1] if fl[-1] % 2 == 0 else None
                k = next((j for j in reversed(fl) if j % 2 == 0), None)
                if k is not None: run[k] = I(run[k].text.replace(run[k].mn, run[k].mn + "_e64", 1))
                else: run.append(I("s_nop 0"))
            else: run.append(I("s_nop 0"))
        out.extend(run); run.clear()
    for i in block:
        if size(i) == 4: run.append(i)
        else: flush(); out.append(i)
    flush()
    return out

def program(fast):
    E = Emitter(); sfx = "" if fast else "_x"
    prio = fast and OPT["prio"]
    first = range(4) if OPT["clate"] else range(7)
    if fast:
        E("s_cmp_ge_u32 s2, 256\ns_cbranch_scc1 L_end")
        stamp(E, 0)
        if prio: E("s_setprio 2")
        head(E, True)
        E(f"s_mov_b32 s{S_FLAG}, {OPT['force_slow']}\ns_mov_b32 s{S_JOB}, 0")
        E(f"s_cmp_ge_u32 s{S_W}, 256\ns_cbranch_scc1 L_y1")
        b0 = pad(E.take())
        E("s_waitcnt lgkmcnt(0)"); probe(E, 10); idx_loads(E, 0)
        o1 = pad(E.take(), [b0]); vq_idx = list(E.vq)
        E.vq = []
        E("L_y1:")
        if OPT["cpf"]:
            a = TM + 24
            E(f"""s_getpc_b64 s[18:19]
            L_pc:
            s_sub_u32 s18, s18, L_pc-{NAME}_kernel
            s_subb_u32 s19, s19, 0""")
            if OPT["cpf"] == 1:
                E(f"""v_bfe_u32 v{a}, v0, 6, 2
                v_and_b32 v{a+1}, 63, v0
                v_min_u32 v{a+1}, 23, v{a+1}
                v_mad_u32_u24 v{a}, v{a}, 24, v{a+1}""")
            else:
                E(f"""s_lshr_b32 s39, s2, 1
                v_bfe_u32 v{a}, v0, 6, 2
                s_and_b32 s39, s39, 0x7c
                v_add_u32 v{a}, s39, v{a}
                v_min_u32 v{a}, 95, v{a}""")
            E(f"""v_lshlrev_b32 v{a}, 7, v{a}
            v_mov_b32 v{a+1}, 0
            v_lshl_add_u64 v[{a}:{a+1}], v[{a}:{a+1}], 0, s[18:19]
            global_load_dword v{a+2}, v[{a}:{a+1}], off""")
        if OPT["ipf"]:
            a = TM + 28
            if OPT["ipf"] == 1:
                E(f"""s_xor_b32 s39, s2, 4
                v_and_b32 v{a}, 255, v0
                s_mul_i32 s39, s39, 6656
                v_min_u32 v{a}, 12, v{a}
                v_lshl_add_u32 v{a}, v{a}, 7, s39""")
            else:
                E(f"""s_and_b32 s39, s2, 0xf8
                v_bfe_u32 v{a+1}, v0, 4, 3
                v_and_b32 v{a}, 15, v0
                v_add_u32 v{a+1}, s39, v{a+1}
                v_min_u32 v{a}, 12, v{a}
                v_mul_u32_u24 v{a+1}, 6656, v{a+1}
                v_lshl_add_u32 v{a}, v{a}, 7, v{a+1}""")
            E(f"s_waitcnt lgkmcnt(0)\nglobal_load_dword v{a+2}, v{a}, s[4:5]")
        E(f"s_cmp_lg_u32 s{S_W}, 256\ns_cbranch_scc1 L_c1")
        y1a = E.take()
        param_loads(E, True); E("s_branch L_c1")
        y1b = pad(E.take(), [b0 + y1a]); vq_par = list(E.vq)
        E("L_c1:"); lane_consts(E, U_, Y4)
        E(f"v_and_b32 v{T2}, 63, v0\nv_lshlrev_b32 v{T2}, 4, v{T2}\nv_add_u32 v{T2}, {PAR}, v{T2}")
        E(f"s_cmp_ge_u32 s{S_W}, 256\ns_cbranch_scc1 L_y2")
        c1 = pad(E.take(), [o1, y1b])
        E(f"L_y2:\ns_cmp_lg_u32 s{S_W}, 256\ns_cbranch_scc1 L_y3")
        y2a = E.take()
        E.wait(r(W32, 8)); probe(E, 14)
        params(E, True); probe(E, 15)
        for k, b in enumerate(PARQ): E(f"ds_write_b128 v{T2}, {r(b,4)} offset:{1024*k}")
        y2b = pad(E.take(), [c1 + y2a])
        E("L_y3:\ns_waitcnt lgkmcnt(0)\ns_barrier"); idx_loads(E, 0); E("s_branch L_g")
        y3 = pad(E.take(), [y2b, c1])
        E.vq = vq_idx
        E("L_g:"); probe(E, 11); E.wait(f"v{I0}"); stamp(E, 1); gathers0(E, first)
        if not OPT["clate"]: idx_loads(E, 1)
        E(f"s_cmp_ge_u32 s{S_W}, 256\ns_cbranch_scc1 L_p")
        g = pad(E.take(), [c1, y3])
        bar = [I("s_barrier")]
        E("L_p:")
        for k, b in enumerate(PARQ): E(f"ds_read_b128 {r(b,4)}, v{T2} offset:{1024*k}")
        stamp(E, 2)
        conv(E, 0, True)
        if prio: E("s_setprio 1")
        stamp(E, 3)
        p = pad(E.take(), [g])
        layout_pre = b0 + o1 + [I('s_branch L_c1')] + y1a + y1b[:-1] + c1 + g + bar + p if OPT.get('near', 1) else b0 + o1 + c1 + g + bar + p
        layout_post = y2a + y2b + y3 if OPT.get('near', 1) else y1a + y1b + y2a + y2b + y3
        pres = [b0 + o1 + c1 + g + bar + p, b0 + y1a + y1b + c1 + y2a + y2b + y3 + g + p, b0 + y1a + c1 + y2a + y3 + g + p]
    else:
        E("L_slow:\ns_setprio 0")
        head(E, False); idx_loads(E, 0); idx_loads(E, 1); param_loads(E, False)
        lane_consts(E, U_, Y4)
        gathers0(E, range(7)); params(E, False)
        E(f"s_mov_b32 s{S_JOB}, 0")
        conv(E, 0, False)
        layout_pre = pad(E.take()); layout_post = []; pres = [layout_pre]
    segs = main(E, fast)
    tail = [I(f"s_cbranch_scc1 L_final{sfx}")]
    if fast: stamp(E, 4)
    if prio: E("s_setprio 2")
    E(f"s_mov_b32 s{S_JOB}, 1\nv_mov_b32 v{ZS}, v{SUM}\nv_mov_b32 v{AS}, v{ACC}")
    if not fast: gathers1(E)
    conv(E, 1, fast)
    if prio: E("s_setprio 0")
    if fast: stamp(E, 5)
    E(f"s_branch L_main{sfx}")
    mid = E.take()
    E.vq, E.lq = [], []
    E(f"L_final{sfx}:")
    if fast: stamp(E, 6)
    final(E, fast)
    if fast and OPT["stamps"]:
        stamp(E, 7); dump_stamps(E, 8)
    if fast: E("L_end:")
    E("s_endpgm")
    fin = E.take()
    al = align8 if fast and OPT["align"] else (lambda x: x)
    segs[0] = al(pad(segs[0], [layout_pre, pad(mid)]))
    if fast:
        segs[1] = al(pad(segs[1], [segs[0]]))
        segs[2] = al(pad(segs[2], [segs[0], segs[1]]))
        run0, run1 = segs[0] + segs[1] + segs[2] + tail, segs[0] + segs[2] + tail
    else:
        run0 = run1 = segs[0] + tail
    mid = pad(mid, [run0]); fin = pad(fin, [run0])
    for pre in pres: check_trace(pre + run0 + mid + run1 + fin)
    return layout_pre + [I(".p2align 3"), I(f"L_main{sfx}:")] + run0 + mid + fin + layout_post

HEAD = open("cdna_kernels/" + NAME + ".s.ref").read().split("; Override launch")[0]
out = HEAD + f"""; @launch grid=(256,1,1) block=(512,1,1) lds={PAR+10240}
; Generated by gen/gen.py.
.amdgcn_target "amdgcn-amd-amdhsa--gfx950"
.text
.globl {NAME}_kernel
.p2align 8
.type {NAME}_kernel,@function
{NAME}_kernel:
"""
fastp, slowp = program(True), program(False)
for i in fastp + slowp:
    out += (i.text if i.kind == "none" else "    " + i.text) + "\n"
out += f""".section .rodata,"a"
.p2align 6
.amdhsa_kernel {NAME}_kernel
  .amdhsa_next_free_vgpr 256
  .amdhsa_next_free_sgpr 96
  .amdhsa_accum_offset 256
  .amdhsa_group_segment_fixed_size 0
  .amdhsa_kernarg_size 88
  .amdhsa_user_sgpr_count 2
  .amdhsa_user_sgpr_kernarg_segment_ptr 1
  .amdhsa_system_sgpr_workgroup_id_x 1
  .amdhsa_float_denorm_mode_32 3
.end_amdhsa_kernel
"""
open(sys.argv[1], "w").write(out)
nn = sum(int(i.ops[0]) + 1 for i in fastp if i.mn == "s_nop")
print("fast instrs", len(fastp), "nop states", nn, "slow instrs", len(slowp))
```

```python
import sys, struct, math
from asmlib import *

NAME = "standalone__factorization_afm__recsys"
OPT = dict(stamps=0, force_slow=0, align=1, prio=1, nt=1, cq=7, clate=0, jq=14, stpol=0, cpf=0, ipf=0, gnt=0)
for a in sys.argv[2:]:
    k, v = a.split("="); OPT[k] = int(v)

def f32(x): return "0x%08x" % struct.unpack("<I", struct.pack("<f", x))[0]
def r(b, n=1): return f"v{b}" if n == 1 else f"v[{b}:{b+n-1}]"

IDX, R0, R1, R3, R4, RT2, RT3, RB, RU, RV, RZ, RM, RW = range(1, 14)
SUM, ACC, T0, T1, ZS, AS, CH16, T2 = range(14, 22)
OFF1, INF, C, D0, W, ALS, AH, AID, P0, Q, SD, RAW, F = 22, 28, 32, 48, 80, 88, 96, 104, 112, 128, 136, 148, 172
NF = 9
SPARE = 244
CH, WLDS = 2080, 8320
PAR = 8 * WLDS
LOG2E = math.log2(math.e)
PSH = 6
S_MPAR, S_MT, S_MB, S_M0, S_M1, S_FLAG, S_JOB, S_T, S_W = 24, 26, 28, 30, 32, 34, 35, 36, 38
def sp(b): return f"s[{b}:{b+1}]"

VERT = {}
for nm, o in (("A", 0), ("B", 1), ("C", 2)):
    for x, reg in ((0, R0), (1, R1), (3, R3)):
        VERT[f"{nm}{x}"] = (reg, 512 * o, (lambda c, o=o, x=x: (o, (x + c) % 8)))
VERT["I1"] = (RB, 1536, lambda c: (3, 0))
VERT["I2"] = (RB, 1552, lambda c: (3, 1))
VERT["T1"] = (R4, 0, lambda c: (0, (c + 4) % 8))
VERT["T2"] = (RT2, 512, lambda c: (2 if c >= 4 else 1, (c + 4) % 8))
VERT["T3"] = (RT3, 1024, lambda c: (1 if c >= 4 else 2, (c + 4) % 8))
VERT["U"] = (RU, 0, lambda c: (3, 0) if c >= 4 else (0, c))
VERT["V"] = (RV, 0, lambda c: (3, 1) if c >= 4 else (0, c + 4))
STEPS = """A0A1 A0A3 A1A3 A0B0 A1B0 A3B0 A0B1 A3B1 B0B1 A0B3 A1B3 B0B3 B1B3
A0C3 A1C3 B0C3 B1C3 A1C0 B1C0 C0C3 A0C0 B0C0 A3C0 B3C0 C1C3 A3C1 B3C1 A0C1 B0C1 C0C1
I1A0 I1B0 I1C0 I2A0 I2B0 I2C0 T1B0 T1C0 T2B0 T3C0""".split()
if OPT.get("ord", 0) == 1:
    STEPS = """A0A1 A0A3 A1A3 A0B0 A1B0 A3B0 A0B1 A3B1 B0B1 A0B3 A1B3 B0B3 B1B3 T1B0
    A1C3 B1C3 A0C3 B0C3 T1C0 A1C0 B1C0 C0C3 A0C0 B0C0 A3C0 B3C0 C1C3 A3C1 B3C1 A0C1 B0C1 C0C1
    I1A0 I1B0 I1C0 I2A0 I2B0 I2C0 T2B0 T3C0""".split()
STEPS = [(s[:2], s[2:]) for s in STEPS] + [("U", "V")]
NS = len(STEPS)
seen = set()
for q, (a, b) in enumerate(STEPS):
    for c in range(8):
        if q == NS - 1 and c >= 5: continue
        e = frozenset((VERT[a][2](c), VERT[b][2](c)))
        assert len(e) == 2 and e not in seen
        seen.add(e)
assert len(seen) == 325 and NS == 41
FIRST = {}; LAST = {}
for q, ab in enumerate(STEPS):
    for v in ab:
        FIRST.setdefault(v, q); LAST[v] = q
NK = (NS + 1) // 2

def probe(E, n):
    if OPT["stamps"] == 3 and OPT["probe"] == n:
        lq = [x for x in E.lq if x.kind == "ds"]
        E("s_memrealtime s[42:43]\ns_waitcnt lgkmcnt(0)")
        E.lq = lq
def stamp(E, n):
    if OPT["stamps"] == 3:
        if n == 0: E("s_memrealtime s[40:41]\ns_mov_b32 s42, 0")
        probe(E, n)
        return
    if OPT["stamps"] == 4:
        if n in (0, 7): E(f"s_memrealtime s[{40+2*n}:{41+2*n}]")
        return
    if OPT["stamps"]:
        E(f"s_memrealtime s[{40+2*n}:{41+2*n}]")
        E(f"s_memtime s[{64+2*n}:{65+2*n}]")
        E("s_waitcnt lgkmcnt(0)")

I0 = P0
GI = INF
W32, BB, W16, HB, PB, XX, YY, TM = F, F + 8, F + 16, F + 24, F + 28, F + 32, F + 36, F + 40

U_, A_, VA, VB, X8, Y4, H16, K16, AW, AW16 = range(TM, TM + 10)
def head(E, first):
    if first:
        E(f"""s_load_dwordx2 s[4:5], s[0:1], 0
        s_load_dwordx2 s[20:21], s[0:1], 8
        s_load_dwordx8 s[8:15], s[0:1], 32
        s_load_dwordx2 s[16:17], s[0:1], 64
        v_readfirstlane_b32 s{S_W}, v0""")
    E(f"""v_lshrrev_b32 v{A_}, 4, v0
    s_mul_i32 s18, s2, 6656
    v_bfe_u32 v{U_}, v0, 2, 2
    v_mul_u32_u24 v{A_}, 104, v{A_}
    s_movk_i32 s19, 416
    v_add_u32 v{A_}, s18, v{A_}
    v_and_b32 v{X8}, 8, v0
    v_mad_u32_u24 v{VA}, v{U_}, 24, v{A_}
    v_and_b32 v{Y4}, 4, v0
    v_mad_u32_u24 v{VB}, v{X8}, s19, v{A_}
    v_add_u32 v{VB}, v{VB}, v{Y4}""")
    if first:
        E("""s_mov_b32 s22, 6400000
        s_mov_b32 s23, 0x00020000""")

def idx_loads(E, job):
    nt = " nt" if OPT["nt"] else ""
    if job == 0:
        E(f"""global_load_dwordx4 {r(I0,4)}, v{VA}, s[4:5]{nt}
        global_load_dwordx2 {r(I0+4,2)}, v{VA}, s[4:5] offset:16{nt}
        global_load_dword v{I0+6}, v{VB}, s[4:5] offset:96{nt}""")
    else:
        E(f"""global_load_dwordx4 {r(OFF1,4)}, v{VA}, s[4:5] offset:3328{nt}
        global_load_dwordx2 {r(OFF1+4,2)}, v{VA}, s[4:5] offset:3344{nt}""")

def param_loads(E, fast):
    E(f"""v_lshrrev_b32 v{H16}, 1, v0
    v_and_b32 v{AW}, 19, v0
    v_and_b32 v{H16}, 16, v{H16}
    v_and_b32 v{K16}, 48, v0
    v_lshl_add_u32 v{AW}, v{AW}, 6, v{H16}
    v_and_b32 v{AW16}, 14, v0
    v_lshl_add_u32 v{AW}, v{Y4}, 7, v{AW}
    v_lshl_add_u32 v{AW16}, v{AW16}, 7, v{K16}
    v_lshl_add_u32 v{AW}, v{X8}, 5, v{AW}
    v_and_b32 v{A_}, 1, v0
    v_lshl_add_u32 v{AW16}, v{A_}, 6, v{AW16}""")
    if fast: E("s_waitcnt lgkmcnt(0)")
    E(f"""global_load_dwordx4 {r(W32,4)}, v{AW}, s[8:9]
    global_load_dwordx4 {r(W32+4,4)}, v{AW}, s[8:9] offset:32
    global_load_dwordx4 {r(BB,4)}, v{H16}, s[10:11]
    global_load_dwordx4 {r(BB+4,4)}, v{H16}, s[10:11] offset:32
    global_load_dwordx4 {r(HB,4)}, v{K16}, s[12:13]
    global_load_dwordx4 {r(PB,4)}, v{K16}, s[14:15]""")
    if fast:
        E(f"""global_load_dwordx4 {r(W16,4)}, v{AW16}, s[8:9]
        global_load_dwordx4 {r(W16+4,4)}, v{AW16}, s[8:9] offset:128""")

def lane_consts(E, u, y4):
    t, l16, one = TM + 10, TM + 11, TM + 12
    z = D0
    E(f"""v_lshrrev_b32 v{t}, 6, v0
    s_movk_i32 s18, {CH}
    v_mul_u32_u24 v{RZ}, {WLDS}, v{t}
    v_and_b32 v{t}, 3, v0
    v_lshlrev_b32 v{CH16}, 4, v{t}
    v_mad_u32_u24 v{RW}, v{t}, s18, v{RZ}
    v_bfe_u32 v{t}, v0, 4, 2
    v_lshl_add_u32 v{RW}, v{u}, 4, v{RW}
    v_lshl_add_u32 v{RW}, v{t}, 7, v{RW}
    v_bfe_u32 v{t}, v0, 5, 1
    v_mad_u32_u24 v{RB}, v{t}, s18, v{RZ}
    v_and_b32 v{t}, 24, v0
    v_and_b32 v{l16}, 7, v0
    v_lshl_add_u32 v{RB}, v{t}, 4, v{RB}
    v_lshl_add_u32 v{R0}, v{l16}, 4, v{RB}
    v_xor_b32 v{t}, 4, v{l16}
    v_lshl_add_u32 v{R4}, v{t}, 4, v{RB}
    v_add_u32 v{t}, 1, v{l16}
    v_and_b32 v{t}, 7, v{t}
    v_lshl_add_u32 v{R1}, v{t}, 4, v{RB}
    v_add_u32 v{t}, 3, v{l16}
    v_and_b32 v{t}, 7, v{t}
    v_lshl_add_u32 v{R3}, v{t}, 4, v{RB}
    v_lshlrev_b32 v{t}, 7, v{y4}
    s_mov_b32 s{S_MB}, 0xf0f0f0f0
    v_add_u32 v{RT2}, v{R4}, v{t}
    s_mov_b32 s{S_MB+1}, s{S_MB}
    v_sub_u32 v{RT3}, v{R4}, v{t}
    v_add_u32 v{t}, 1536, v{RB}
    s_mov_b32 s{S_M0}, 0xe0e0e0e0
    v_cndmask_b32_e64 v{RU}, v{R0}, v{t}, {sp(S_MB)}
    v_add_u32 v{t}, 16, v{t}
    s_mov_b32 s{S_M0+1}, -1
    v_cndmask_b32_e64 v{RV}, v{R4}, v{t}, {sp(S_MB)}
    v_add_u32 v{t}, 16, v{RZ}
    v_mov_b32 v{z}, 0xff800000
    v_cndmask_b32_e64 v{RM}, v{RZ}, v{t}, {sp(S_M0)}
    v_cndmask_b32_e64 v{z}, 0, v{z}, {sp(S_M0)}
    v_mov_b32 v{z+1}, 0
    v_mov_b64 {r(z+2,2)}, 0
    s_mov_b32 s{S_MPAR}, 0xaaaaaaaa
    ds_write_b128 v{RM}, {r(z,4)} offset:2048
    s_mov_b32 s{S_MPAR+1}, s{S_MPAR}
    v_mov_b32 v{t}, 0x4444
    v_mov_b32 v{IDX}, 0xeeee
    s_mov_b32 s{S_MT}, 0xcccccccc
    v_cndmask_b32_e64 v{IDX}, v{t}, v{IDX}, {sp(S_MPAR)}
    v_mov_b32 v{t}, 0x3f80
    s_mov_b32 s{S_MT+1}, s{S_MT}
    v_cndmask_b32_e64 v{one}, v{t}, 1.0, {sp(S_MPAR)}
    s_mov_b32 s{S_M0}, 3
    s_mov_b32 s{S_M0+1}, 48""")
    for R in range(8):
        sh = 8 * (R // 2) + 2 * (R % 2)
        m = S_M0
        if sh:
            m = S_M1 if R % 2 else S_T
            E(f"s_lshl_b64 {sp(m)}, {sp(S_M0)}, {sh}")
        E(f"v_cndmask_b32_e64 v{AID+R}, 0, v{one}, {sp(m)}")

def gather(E, idx, dst, lvl=3):
    E(f"buffer_load_dwordx4 {r(dst,4)}, v{idx}, s[20:23], 0 offen" + (" nt" if OPT["gnt"] >= lvl else ""))

def gathers0(E, which):
    for t in which:
        i, d = (I0 + t, RAW + 4 * t) if t < 6 else (I0 + 6, GI)
        E.wait(f"v{i}")
        E(f"v_lshl_add_u32 v{i}, v{i}, 6, v{CH16}")
        gather(E, i, d, 1 if t < 4 else 2)
def gathers1(E):
    E.wait(r(OFF1, 6))
    for t in range(6):
        E(f"v_lshl_add_u32 v{OFF1+t}, v{OFF1+t}, 6, v{CH16}")
        gather(E, OFF1 + t, RAW + 4 * t)
PARQ = [W, W+4, C, C+4, C+8, C+12, ALS, ALS+4, AH, AH+4]

def params(E, fast):
    D1 = D0 + 16
    E.wait(r(W32, 8))
    E(f"v_mfma_f32_32x32x16_bf16 {r(D1,16)}, {r(W32,4)}, {r(AID,4)}, 0")
    E(f"v_mfma_f32_32x32x16_bf16 {r(D1,16)}, {r(W32+4,4)}, {r(AID+4,4)}, {r(D1,16)}")
    E.wait(r(BB, 8))
    E(f"v_mfma_f32_32x32x16_bf16 {r(C,16)}, {r(AID,4)}, {r(BB,4)}, 0")
    E(f"v_mfma_f32_32x32x16_bf16 {r(C,16)}, {r(AID+4,4)}, {r(BB+4,4)}, {r(C,16)}")
    E.wait(r(HB, 8))
    vh, vp, pf, kk = TM + 14, TM + 16, TM + 18, TM + 22
    for j in range(2):
        E(f"v_cndmask_b32_e64 v{vh+j}, v{HB+2*j}, v{HB+2*j+1}, {sp(S_MPAR)}")
        E(f"v_cndmask_b32_e64 v{vp+j}, v{PB+2*j}, v{PB+2*j+1}, {sp(S_MPAR)}")
    if fast:
        E.wait(r(W16, 8))
        E(f"v_mfma_f32_16x16x32_bf16 {r(XX,4)}, {r(W16,4)}, {r(HB,4)}, 0")
        E(f"v_mfma_f32_16x16x32_bf16 {r(YY,4)}, {r(W16+4,4)}, {r(HB,4)}, 0")
    E(f"s_mov_b32 s{S_M0}, 0x00030003\ns_mov_b32 s{S_M0+1}, s{S_M0}")
    for g in range(4):
        m = S_M0
        if g:
            m = S_M1 if g % 2 else S_T
            E(f"s_lshl_b64 {sp(m)}, {sp(S_M0)}, {4*g}")
        for j in range(2):
            E(f"v_cndmask_b32_e64 v{AH+2*g+j}, 0, v{vh+j}, {sp(m)}")
    if fast:
        E(f"s_mov_b32 s18, {f32(LOG2E/2)}")
        E(f"s_mov_b32 s19, {f32(2.0**-7)}")
        for j in range(2):
            E(f"v_lshlrev_b32 v{pf+2*j}, 16, v{vp+j}")
            E(f"v_and_b32 v{pf+2*j+1}, 0xffff0000, v{vp+j}")
        E(f"v_mov_b32 v{kk}, s18")
        E(f"v_mov_b32 v{kk+1}, {f32(2.0**PSH)}")
        E(f"v_cmp_le_f32_e64 vcc, s19, |v{D1}|")
        E(f"v_cndmask_b32_e64 v{kk+1}, v{kk}, v{kk+1}, {sp(S_MT)}")
        for k in range(8):
            E(f"v_mul_f32 v{D1+2*k}, v{kk}, v{D1+2*k}")
            E(f"v_mul_f32 v{D1+2*k+1}, v{kk}, v{D1+2*k+1}")
            if k == 0:
                E(f"s_cmp_eq_u64 vcc, 0\ns_cselect_b32 s18, -1, s18")
            E(f"v_cvt_pk_f16_f32 v{W+k}, v{D1+2*k}, v{D1+2*k+1}")
        for k in range(4):
            E(f"v_cndmask_b32_e64 v{XX+k}, v{XX+k}, v{YY+k}, {sp(S_MPAR)}")
            E(f"v_cndmask_b32_e64 v{XX+k}, v{XX+k}, v{pf+k}, {sp(S_MT)}")
            E(f"v_mul_f32 v{XX+k}, v{kk+1}, v{XX+k}")
        E(f"v_cmp_le_f32_e64 vcc, s19, |v{XX}|")
        for j in range(2):
            E(f"v_cvt_pk_f16_f32 v{vp+j}, v{XX+2*j}, v{XX+2*j+1}")
        E(f"""s_and_b64 {sp(S_T)}, vcc, {sp(S_MT)}
        s_cselect_b32 s18, s18, -1
        s_andn2_b64 {sp(S_T)}, vcc, {sp(S_MT)}
        s_cselect_b32 s18, s18, -1""")
        for k in range(16):
            E(f"v_mul_f32 v{C+k}, s18, v{C+k}")
    else:
        for k in range(8):
            E(f"v_cvt_pk_bf16_f32 v{W+k}, v{D1+2*k}, v{D1+2*k+1}")
    E(f"s_mov_b32 s{S_M0}, {'0x000f000f' if fast else '0x000c000c'}\ns_mov_b32 s{S_M0+1}, s{S_M0}")
    for g in range(4):
        m = S_M0
        if g:
            m = S_M1 if g % 2 else S_T
            E(f"s_lshl_b64 {sp(m)}, {sp(S_M0)}, {4*g}")
        for j in range(2):
            E(f"v_cndmask_b32_e64 v{ALS+2*g+j}, 0, v{vp+j}, {sp(m)}")

PRE = ["A0", "A1", "A3", "B0"]
def slot_reg(s): return F + 8 * s
def rd(E, v, s, t):
    reg, off, _ = VERT[v]
    E(f"ds_read_b128 {r(slot_reg(s)+4*t,4)}, v{reg} offset:{off + 2*CH*t}")
def zinit(E, k):
    E(f"ds_read_b128 {r(SD+4*(k%3),4)}, v{RM if k == NK-1 else RZ} offset:2048")

def mm(E, d, g, hi):
    E.wait(r(g, 4))
    E(f"v_mfma_f32_32x32x16_bf16 {r(d,16)}, {r(AID+4*hi,4)}, {r(g,4)}, {r(d,16) if hi else 0}")
def cv(dst, d, ks):
    return [f"v_cvt_pk_f16_f32 v{dst+k}, v{d+2*k}, v{d+2*k+1}" for k in ks]
def wr(E, src, off):
    E.wait(r(src, 4))
    E(f"ds_write_b128 v{RW}, {r(src,4)} offset:{off}")

def conv(E, job, fast):
    D1 = D0 + 16; P1 = P0 + 8
    if fast:
        if job: wr(E, INF, 1536 - 32)
        mm(E, D0, RAW, 0); mm(E, D0, RAW+4, 1)
        if job == 0: probe(E, 13)
        if job == 0 and OPT["clate"] == 1:
            gathers0(E, (4, 5, 6)); idx_loads(E, 1)
        mm(E, D1, RAW+8, 0); mm(E, D1, RAW+12, 1)
        E(f"s_mov_b32 s19, {f32(0.125)}")
        E(f"v_cmp_le_f32_e64 vcc, s19, |v{D0}|")
        E("\n".join(cv(P1, D0, range(4)))); wr(E, P1, 0)
        E("\n".join(cv(P1, D0, range(4, 8)))); wr(E, P1+4, 64)
    else:
        wr(E, RAW, 0); wr(E, RAW+4, 64)
    for s, v in enumerate(PRE[:3]):
        rd(E, v, s, 0); rd(E, v, s, 1)
    zinit(E, 0)
    if fast:
        E("\n".join(cv(Q, D1, range(4)))); wr(E, Q, 512)
        E(f"""s_and_b32 s18, vcc_lo, 0xffff
        s_cselect_b32 s{S_FLAG}, s{S_FLAG}, 1
        s_lshr_b32 s18, vcc_lo, 16
        s_cselect_b32 s{S_FLAG}, s{S_FLAG}, 1""")
        E("\n".join(cv(Q, D1, range(4, 8)))); wr(E, Q+4, 576)
        E(f"""s_and_b32 s18, vcc_hi, 0xffff
        s_cselect_b32 s{S_FLAG}, s{S_FLAG}, 1
        s_lshr_b32 s18, vcc_hi, 16
        s_cselect_b32 s{S_FLAG}, s{S_FLAG}, 1""")
    else:
        wr(E, RAW+8, 512); wr(E, RAW+12, 576)
        wr(E, INF, 1536 - 32 * job)
        wr(E, RAW+16, 1024); wr(E, RAW+20, 1088)
    rd(E, PRE[3], 3, 0); rd(E, PRE[3], 3, 1)
    E(f"s_cmp_lg_u32 s{S_JOB}, 0")

EV = [RAW + k for k in range(21)]
SV = [RAW+21, RAW+22, RAW+23] + [AID + k for k in range(8)] + [SPARE + k for k in range(10)]
def main(E, fast):
    slot = {v: s for s, v in enumerate(PRE)}
    free = list(range(len(PRE), NF))
    todo = sorted([v for v in VERT if v not in PRE], key=lambda v: FIRST[v])
    half = []
    zq = list(range(1, NK))
    zfree = {1: -9, 2: -9}
    ty = "f16" if fast else "bf16"
    def pk(q, ks):
        if not 0 <= q < NS: return []
        a, b = (slot_reg(slot[v]) for v in STEPS[q]); P = P0 + 8 * (q % 2)
        if fast: return [f"v_pk_mul_f16 v{P+k}, v{a+k}, v{b+k}" for k in ks]
        return [f"""v_lshlrev_b32 v{T0}, 16, v{a+k}
                v_lshlrev_b32 v{T1}, 16, v{b+k}
                v_mul_f32 v{T0}, v{T0}, v{T1}
                v_and_b32 v{T1}, 0xffff0000, v{a+k}
                v_and_b32 v{T2}, 0xffff0000, v{b+k}
                v_mul_f32 v{T1}, v{T1}, v{T2}
                v_cvt_pk_bf16_f32 v{P+k}, v{T0}, v{T1}""" for k in ks]
    def cvt(q, ks):
        if not 0 <= q < NS: return []
        D = D0 + 16 * (q % 2)
        if fast: return [f"v_cvt_pk_bf16_f32 v{Q+k}, |v{D+2*k}|, |v{D+2*k+1}|" for k in ks]
        return [f"v_cvt_pk_bf16_f32 v{Q+k}, v{D+2*k}, v{D+2*k+1}\nv_pk_max_i16 v{Q+k}, v{Q+k}, 0" for k in ks]
    CQ, JQ = OPT["cq"], OPT["jq"]
    DC = slot_reg(NF - 2)
    ready = {v: (CQ + 3 if v[0] == "C" or v in ("T2", "T3") else JQ + 1 if v[0] in "IUV" else -9) if fast else -9 for v in VERT}
    held = [NF - 2, NF - 1] if fast else []
    free = [x for x in free if x not in held]
    wq = []
    def shadow(q):
        shadow_read(q)
        if wq: wr(E, *wq.pop(0))
    def shadow_read(q):
        cand = []
        if zq and zfree.get(zq[0], 99) <= q: cand.append((2 * zq[0] - 0.5, "z"))
        if half: cand.append((FIRST[half[0]] - 1, "h"))
        elif todo and free and ready[todo[0]] <= q: cand.append((FIRST[todo[0]] - 1, "f"))
        if not cand: return
        what = min(cand)[1]
        if what == "z": zinit(E, zq.pop(0))
        elif what == "h":
            v = half.pop(0); rd(E, v, slot[v], 1)
        else:
            v = todo.pop(0); slot[v] = free.pop(0); rd(E, v, slot[v], 0); half.append(v)
    def soft(k, part):
        if not 0 <= k < NK: return []
        sd = SD + 4 * (k % 3)
        if not fast:
            return [f"v_add_f32 v{EV[k]}, v{sd}, v{sd+1}", f"v_add_f32 v{SV[k]}, v{sd+2}, v{sd+3}"] if part == 0 else []
        w = SUM if k == 0 else T0
        if part == 0: return [f"v_add_f32 v{T0}, v{sd}, v{sd+1}", f"v_exp_f32 v{w}, v{T0}"]
        if k == 0: return [f"v_mul_f32 v{ACC}, v{w}, v{sd+2}", f"v_fmac_f32 v{ACC}, v{w}, v{sd+3}"]
        return [f"v_add_f32 v{SUM}, v{SUM}, v{w}", f"v_fmac_f32 v{ACC}, v{w}, v{sd+2}", f"v_fmac_f32 v{ACC}, v{w}, v{sd+3}"]
    def out(L):
        for x in L: E(x)
    E.wait(r(slot_reg(0), 16))
    out(pk(0, range(8)))
    segs = []
    for q in range(NS + 1):
        live = q < NS
        P = P0 + 8 * (q % 2); D = D0 + 16 * (q % 2)
        so = soft((q - 3) // 2, 0) if q % 2 else soft((q - 4) // 2, 1)
        extra = fast and q in (CQ, CQ + 1)
        if live: E(f"v_mfma_f32_32x32x16_{ty} {r(D,16)}, {r(W,4)}, {r(P,4)}, {r(C,16)}")
        out(cvt(q - 1, range(6)))
        if live: E(f"v_mfma_f32_32x32x16_{ty} {r(D,16)}, {r(W+4,4)}, {r(P+4,4)}, {r(D,16)}")
        nxt = [r(slot_reg(slot[v]), 8) for v in STEPS[q + 1]] if q + 1 < NS else []
        assert not live or q // 2 not in zq
        assert q + 1 >= NS or not set(STEPS[q + 1]) & set(half)
        if live: E.wait(r(SD + 4 * ((q // 2) % 3), 4), *nxt)
        if so: E(so.pop(0))
        out(cvt(q - 1, range(6, 8)))
        p = pk(q + 1, range(8))
        n1, n2 = (3, 4) if extra else (4, 6)
        out(p[:n1])
        if fast and q == CQ + 2:
            out(cv(RAW, DC, range(4))); wq.append((RAW, 1024))
        if q % 2 == 0 and not extra:
            out(so); so = []
        if q % 2 == 0 and q >= 4: zfree[(q - 4) // 2 + 3] = q + extra
        if live: E(f"v_smfmac_f32_16x16x64_{ty} {r(SD+4*((q//2)%3),4)}, {r(ALS+4*(q%2),4)}, {r(P,8)}, v{IDX}")
        shadow(q)
        out(p[n1:n2])
        if fast and q == CQ + 2:
            out(cv(RAW, DC, range(4, 8))); wq.append((RAW + 4, 1088))
            free += held
        if q >= 1: E(f"v_smfmac_f32_16x16x64_bf16 {r(SD+4*(((q-1)//2)%3),4)}, {r(AH+4*((q-1)%2),4)}, {r(Q,8)}, v{IDX}")
        if extra:
            if q == CQ: E("s_waitcnt vmcnt(0)")
            else: shadow(q)
            out(p[n2:n2+1]); n2 += 1
            mm(E, DC, RAW + 16 + 4 * (q - CQ), q - CQ)
        else: shadow(q)
        out(p[n2:]); out(so)
        if fast and q == JQ:
            E("s_cbranch_scc1 L_skip")
            segs.append(E.take()); lq = list(E.lq)
            mm(E, RAW, GI, 0)
            for t in range(6): E(f"v_lshl_add_u32 v{OFF1+t}, v{OFF1+t}, 6, v{CH16}")
            for t in (4, 5): gather(E, OFF1 + t, RAW + 4 * t)
            out(cv(INF, RAW, range(4)))
            for t in range(4): gather(E, OFF1 + t, RAW + 4 * t)
            wr(E, INF, 1536)
            segs.append(E.take()); E.lq = lq
            E("L_skip:")
        if q + 1 < NS:
            for v in STEPS[q + 1]:
                if LAST[v] == q + 1: free.append(slot[v])
    assert not todo and not half and not zq
    for x in soft(NK - 2, 1) + soft(NK - 1, 0) + soft(NK - 1, 1): E(x)
    if not fast:
        E(f"v_max3_f32 v{T0}, v{EV[0]}, v{EV[1]}, v{EV[2]}")
        for k in range(3, NK, 2): E(f"v_max3_f32 v{T0}, v{T0}, v{EV[k]}, v{EV[k+1]}")
        for ctl in ("quad_perm:[1,0,3,2]", "quad_perm:[2,3,0,1]", "row_half_mirror"):
            E(f"v_max_f32_dpp v{T0}, v{T0}, v{T0} {ctl} row_mask:0xf bank_mask:0xf")
        E(f"v_mov_b32 v{T1}, v{T0}\nv_permlane32_swap_b32 v{T0}, v{T1}\nv_max_f32 v{T0}, v{T0}, v{T1}")
        E(f"v_mov_b32 v{SUM}, 0\nv_mov_b32 v{ACC}, 0")
        for k in range(NK):
            E(f"""v_sub_f32 v{T1}, v{EV[k]}, v{T0}
            v_mul_f32 v{T1}, {f32(LOG2E)}, v{T1}
            v_exp_f32 v{T1}, v{T1}
            v_add_f32 v{SUM}, v{SUM}, v{T1}
            v_fmac_f32 v{ACC}, v{T1}, v{SV[k]}""")
    return segs + [E.take()]

def final(E, fast):
    E(f"""v_permlane32_swap_b32 v{ZS}, v{SUM}
    v_permlane32_swap_b32 v{AS}, v{ACC}
    v_add_f32 v{SUM}, v{ZS}, v{SUM}
    v_add_f32 v{ACC}, v{AS}, v{ACC}
    v_lshrrev_b32 v{T0}, 6, v0""")
    fill = [f"v_bfe_u32 v{T1}, v0, 3, 2", f"v_lshl_add_u32 v{T0}, v{T0}, 2, v{T1}", f"v_and_b32 v{T1}, 32, v0"]
    for ctl in ("quad_perm:[1,0,3,2]", "quad_perm:[2,3,0,1]", "row_half_mirror"):
        E(f"v_add_f32_dpp v{SUM}, v{SUM}, v{SUM} {ctl} row_mask:0xf bank_mask:0xf")
        E(f"v_add_f32_dpp v{ACC}, v{ACC}, v{ACC} {ctl} row_mask:0xf bank_mask:0xf")
        E(fill.pop(0))
    E(f"""v_rcp_f32 v{ZS}, v{SUM}
    s_lshl_b32 s18, s2, 6
    v_add3_u32 v{T0}, v{T0}, v{T1}, s18""")
    if fast:
        lo, hi = (127 - 64) << 23, (127 + 100) << 23
        E(f"""v_mul_f32 v{ACC}, {f32(2.0**-PSH)}, v{ACC}
        v_subrev_u32 v{SUM}, {lo}, v{SUM}
        v_mul_f32 v{ACC}, v{ACC}, v{ZS}
        v_cmp_lt_u32 vcc, {hi-lo}, v{SUM}
        s_movk_i32 s18, 0x207
        v_cmp_class_f32_e64 {sp(S_T)}, v{ACC}, s18
        v_lshlrev_b32 v{T0}, 1, v{T0}
        v_cvt_pk_bf16_f32 v{ACC}, v{ACC}, v{ACC}
        s_or_b64 {sp(S_T)}, vcc, {sp(S_T)}
        s_cbranch_scc1 L_slow
        s_cmp_lg_u32 s{S_FLAG}, 0
        s_cbranch_scc1 L_slow""")
    else:
        E(f"""v_mul_f32 v{ACC}, v{ACC}, v{ZS}
        v_lshlrev_b32 v{T0}, 1, v{T0}
        v_cvt_pk_bf16_f32 v{ACC}, v{ACC}, v{ACC}""")
    E(f"""s_mov_b32 exec_lo, 0x01010101
    s_mov_b32 exec_hi, 0x01010101
    global_store_short v{T0}, v{ACC}, s[16:17]{["", " sc0 sc1", " nt", " sc1"][OPT["stpol"]]}""")

def dump_stamps(E, n):
    if OPT["stamps"] == 3:
        E(f"""v_readfirstlane_b32 s18, v0
        s_sub_u32 s19, s42, s40
        s_lshl_b32 s19, s19, 3
        s_add_u32 s19, s19, 3000
        s_cmp_lg_u32 s18, {64*OPT.get('ampw',0)}
        s_cbranch_scc1 L_end
        s_cmp_{'lg' if OPT.get('ampwg',100) >= 0 else 'eq'}_u32 s2, {OPT.get('ampwg',100)}
        s_cbranch_scc1 L_end
        L_spin:
        s_memrealtime s[4:5]
        s_waitcnt lgkmcnt(0)
        s_sub_u32 s4, s4, s40
        s_cmp_lt_u32 s4, s19
        s_cbranch_scc1 L_spin""")
        return
    if OPT["stamps"] == 2:
        E("s_load_dwordx2 s[4:5], s[0:1], 72\ns_mov_b64 exec, 1\nv_mov_b32 v1, 0\ns_waitcnt lgkmcnt(0)")
        for k in range(n):
            E(f"v_mov_b32 v2, s{40+2*k}\nv_not_b32 v3, v2\nglobal_atomic_umax v1, v3, s[4:5] offset:{8*k}\nglobal_atomic_umax v1, v2, s[4:5] offset:{8*k+4}\ns_nop 1")
        return
    E("s_load_dwordx2 s[4:5], s[0:1], 80\ns_mov_b64 exec, 1\nv_lshrrev_b32 v1, 6, v0\ns_lshl_b32 s18, s2, 3\nv_add_u32 v1, s18, v1\nv_lshlrev_b32 v1, 7, v1\ns_waitcnt lgkmcnt(0)")
    for k in (range(n) if OPT["stamps"] != 4 else (0, 7)):
        E(f"v_mov_b32 v2, s{40+2*k}\nv_mov_b32 v3, s{64+2*k}\nglobal_store_dwordx2 v1, v[2:3], s[4:5] offset:{8*k}\ns_nop 1")
    E("s_getreg_b32 s18, hwreg(HW_REG_HW_ID)\ns_getreg_b32 s19, hwreg(HW_REG_XCC_ID)\nv_mov_b32 v2, s18\nv_mov_b32 v3, s19\nglobal_store_dwordx2 v1, v[2:3], s[4:5] offset:120")

FLEX = ("v_add_f32", "v_exp_f32", "v_fmac_f32", "v_mul_f32")
def size(i):
    if i.kind == "none": return 0
    if i.kind in ("mfma", "ds", "vmem", "smem"): return 8
    if i.kind == "valu" and (i.mn.endswith("_e64") or i.mn.startswith(("v_pk_", "v_cvt_pk", "v_lshl_add"))): return 8
    assert i.mn in FLEX or i.mn in ("s_waitcnt", "s_nop", "s_setprio", "s_cbranch_scc1"), i.text
    return 4
def align8(block):
    out, run = [], []
    def flush():
        if len(run) % 2:
            fl = [k for k, x in enumerate(run) if x.mn in FLEX]
            if fl:
                k = fl[-1] if fl[-1] % 2 == 0 else None
                k = next((j for j in reversed(fl) if j % 2 == 0), None)
                if k is not None: run[k] = I(run[k].text.replace(run[k].mn, run[k].mn + "_e64", 1))
                else: run.append(I("s_nop 0"))
            else: run.append(I("s_nop 0"))
        out.extend(run); run.clear()
    for i in block:
        if size(i) == 4: run.append(i)
        else: flush(); out.append(i)
    flush()
    return out

def program(fast):
    E = Emitter(); sfx = "" if fast else "_x"
    prio = fast and OPT["prio"]
    first = range(4) if OPT["clate"] else range(7)
    if fast:
        E("s_cmp_ge_u32 s2, 256\ns_cbranch_scc1 L_end")
        stamp(E, 0)
        if prio: E("s_setprio 2")
        head(E, True)
        E(f"s_mov_b32 s{S_FLAG}, {OPT['force_slow']}\ns_mov_b32 s{S_JOB}, 0")
        E(f"s_cmp_ge_u32 s{S_W}, 256\ns_cbranch_scc1 L_y1")
        b0 = pad(E.take())
        E("s_waitcnt lgkmcnt(0)"); probe(E, 10); idx_loads(E, 0)
        o1 = pad(E.take(), [b0]); vq_idx = list(E.vq)
        E.vq = []
        E("L_y1:")
        if OPT["cpf"]:
            a = TM + 24
            E(f"""s_getpc_b64 s[18:19]
            L_pc:
            s_sub_u32 s18, s18, L_pc-{NAME}_kernel
            s_subb_u32 s19, s19, 0""")
            if OPT["cpf"] == 1:
                E(f"""v_bfe_u32 v{a}, v0, 6, 2
                v_and_b32 v{a+1}, 63, v0
                v_min_u32 v{a+1}, 23, v{a+1}
                v_mad_u32_u24 v{a}, v{a}, 24, v{a+1}""")
            else:
                E(f"""s_lshr_b32 s39, s2, 1
                v_bfe_u32 v{a}, v0, 6, 2
                s_and_b32 s39, s39, 0x7c
                v_add_u32 v{a}, s39, v{a}
                v_min_u32 v{a}, 95, v{a}""")
            E(f"""v_lshlrev_b32 v{a}, 7, v{a}
            v_mov_b32 v{a+1}, 0
            v_lshl_add_u64 v[{a}:{a+1}], v[{a}:{a+1}], 0, s[18:19]
            global_load_dword v{a+2}, v[{a}:{a+1}], off""")
        if OPT["ipf"]:
            a = TM + 28
            if OPT["ipf"] == 1:
                E(f"""s_xor_b32 s39, s2, 4
                v_and_b32 v{a}, 255, v0
                s_mul_i32 s39, s39, 6656
                v_min_u32 v{a}, 12, v{a}
                v_lshl_add_u32 v{a}, v{a}, 7, s39""")
            else:
                E(f"""s_and_b32 s39, s2, 0xf8
                v_bfe_u32 v{a+1}, v0, 4, 3
                v_and_b32 v{a}, 15, v0
                v_add_u32 v{a+1}, s39, v{a+1}
                v_min_u32 v{a}, 12, v{a}
                v_mul_u32_u24 v{a+1}, 6656, v{a+1}
                v_lshl_add_u32 v{a}, v{a}, 7, v{a+1}""")
            E(f"s_waitcnt lgkmcnt(0)\nglobal_load_dword v{a+2}, v{a}, s[4:5]")
        E(f"s_cmp_lg_u32 s{S_W}, 256\ns_cbranch_scc1 L_c1")
        y1a = E.take()
        param_loads(E, True); E("s_branch L_c1")
        y1b = pad(E.take(), [b0 + y1a]); vq_par = list(E.vq)
        E("L_c1:"); lane_consts(E, U_, Y4)
        E(f"v_and_b32 v{T2}, 63, v0\nv_lshlrev_b32 v{T2}, 4, v{T2}\nv_add_u32 v{T2}, {PAR}, v{T2}")
        E(f"s_cmp_ge_u32 s{S_W}, 256\ns_cbranch_scc1 L_y2")
        c1 = pad(E.take(), [o1, y1b])
        E("L_y2:")
        if OPT["clate"] == 2: E("s_barrier")
        E(f"s_cmp_lg_u32 s{S_W}, 256\ns_cbranch_scc1 L_y3")
        y2a = E.take()
        E.wait(r(W32, 8)); probe(E, 14)
        params(E, True); probe(E, 15)
        for k, b in enumerate(PARQ): E(f"ds_write_b128 v{T2}, {r(b,4)} offset:{1024*k}")
        y2b = pad(E.take(), [c1 + y2a])
        E("L_y3:\ns_waitcnt lgkmcnt(0)\ns_barrier"); idx_loads(E, 0); E("s_branch L_g")
        y3 = pad(E.take(), [y2b, c1])
        E.vq = vq_idx
        E("L_g:"); probe(E, 11); E.wait(f"v{I0}"); stamp(E, 1); gathers0(E, first)
        if OPT["clate"] == 2:
            E(f"s_cmp_ge_u32 s{S_W}, 256\ns_cbranch_scc1 L_g2\ns_barrier\nL_g2:")
            gathers0(E, (4, 5, 6))
        if OPT["clate"] != 1: idx_loads(E, 1)
        E(f"s_cmp_ge_u32 s{S_W}, 256\ns_cbranch_scc1 L_p")
        g = pad(E.take(), [c1, y3])
        bar = [I("s_barrier")]
        E("L_p:")
        for k, b in enumerate(PARQ): E(f"ds_read_b128 {r(b,4)}, v{T2} offset:{1024*k}")
        stamp(E, 2)
        conv(E, 0, True)
        if prio: E("s_setprio 1")
        stamp(E, 3)
        p = pad(E.take(), [g])
        layout_pre = b0 + o1 + [I('s_branch L_c1')] + y1a + y1b[:-1] + c1 + g + bar + p if OPT.get('near', 1) else b0 + o1 + c1 + g + bar + p
        layout_post = y2a + y2b + y3 if OPT.get('near', 1) else y1a + y1b + y2a + y2b + y3
        pres = [b0 + o1 + c1 + g + bar + p, b0 + y1a + y1b + c1 + y2a + y2b + y3 + g + p, b0 + y1a + c1 + y2a + y3 + g + p]
    else:
        E("L_slow:\ns_setprio 0")
        head(E, False); idx_loads(E, 0); idx_loads(E, 1); param_loads(E, False)
        lane_consts(E, U_, Y4)
        gathers0(E, range(7)); params(E, False)
        E(f"s_mov_b32 s{S_JOB}, 0")
        conv(E, 0, False)
        layout_pre = pad(E.take()); layout_post = []; pres = [layout_pre]
    segs = main(E, fast)
    tail = [I(f"s_cbranch_scc1 L_final{sfx}")]
    if fast: stamp(E, 4)
    if prio: E("s_setprio 2")
    E(f"s_mov_b32 s{S_JOB}, 1\nv_mov_b32 v{ZS}, v{SUM}\nv_mov_b32 v{AS}, v{ACC}")
    if not fast: gathers1(E)
    conv(E, 1, fast)
    if prio: E("s_setprio 0")
    if fast: stamp(E, 5)
    E(f"s_branch L_main{sfx}")
    mid = E.take()
    E.vq, E.lq = [], []
    E(f"L_final{sfx}:")
    if fast: stamp(E, 6)
    final(E, fast)
    if fast and OPT["stamps"]:
        stamp(E, 7); dump_stamps(E, 8)
    if fast: E("L_end:")
    E("s_endpgm")
    fin = E.take()
    al = align8 if fast and OPT["align"] else (lambda x: x)
    segs[0] = al(pad(segs[0], [layout_pre, pad(mid)]))
    if fast:
        segs[1] = al(pad(segs[1], [segs[0]]))
        segs[2] = al(pad(segs[2], [segs[0], segs[1]]))
        run0, run1 = segs[0] + segs[1] + segs[2] + tail, segs[0] + segs[2] + tail
    else:
        run0 = run1 = segs[0] + tail
    mid = pad(mid, [run0]); fin = pad(fin, [run0])
    for pre in pres: check_trace(pre + run0 + mid + run1 + fin)
    return layout_pre + [I(".p2align 3"), I(f"L_main{sfx}:")] + run0 + mid + fin + layout_post

HEAD = open("cdna_kernels/" + NAME + ".s.ref").read().split("; Override launch")[0]
out = HEAD + f"""; @launch grid=(256,1,1) block=(512,1,1) lds={PAR+10240}
; Generated by gen/gen.py.
.amdgcn_target "amdgcn-amd-amdhsa--gfx950"
.text
.globl {NAME}_kernel
.p2align 8
.type {NAME}_kernel,@function
{NAME}_kernel:
"""
fastp, slowp = program(True), program(False)
for i in fastp + slowp:
    out += (i.text if i.kind == "none" else "    " + i.text) + "\n"
out += f""".section .rodata,"a"
.p2align 6
.amdhsa_kernel {NAME}_kernel
  .amdhsa_next_free_vgpr 256
  .amdhsa_next_free_sgpr 96
  .amdhsa_accum_offset 256
  .amdhsa_group_segment_fixed_size 0
  .amdhsa_kernarg_size 88
  .amdhsa_user_sgpr_count 2
  .amdhsa_user_sgpr_kernarg_segment_ptr 1
  .amdhsa_system_sgpr_workgroup_id_x 1
  .amdhsa_float_denorm_mode_32 3
.end_amdhsa_kernel
"""
open(sys.argv[1], "w").write(out)
nn = sum(int(i.ops[0]) + 1 for i in fastp if i.mn == "s_nop")
print("fast instrs", len(fastp), "nop states", nn, "slow instrs", len(slowp))
```

```python
import sys, struct, math
from asmlib import *

NAME = "standalone__factorization_afm__recsys"
OPT = dict(stamps=0, force_slow=0, align=1, prio=1, nt=1, cq=9, clate=2, ord=1, jq=14, stpol=0, cpf=2, ipf=0, gnt=0, lead=2)
for a in sys.argv[2:]:
    k, v = a.split("="); OPT[k] = int(v)

def f32(x): return "0x%08x" % struct.unpack("<I", struct.pack("<f", x))[0]
def r(b, n=1): return f"v{b}" if n == 1 else f"v[{b}:{b+n-1}]"

IDX, R0, R1, R3, R4, RT2, RT3, RB, RU, RV, RZ, RM, RW = range(1, 14)
SUM, ACC, T0, T1, ZS, AS, CH16, T2 = range(14, 22)
OFF1, INF, C, D0, W, ALS, AH, AID, P0, Q, SD, RAW, F = 22, 28, 32, 48, 80, 88, 96, 104, 112, 128, 136, 148, 172
NF = 9
SPARE = 244
CH, WLDS = 2080, 8320
PAR = 8 * WLDS
LOG2E = math.log2(math.e)
PSH = 6
ESH = 5
USH = 6
VEXP = 12 + USH
XM, MU, VA0 = AH, AH + 1, AH + 4
PARZ = PAR + 9 * 1024
S_MPAR, S_MT, S_MB, S_M0, S_M1, S_FLAG, S_JOB, S_T, S_W = 24, 26, 28, 30, 32, 34, 35, 36, 38
def sp(b): return f"s[{b}:{b+1}]"

VERT = {}
for nm, o in (("A", 0), ("B", 1), ("C", 2)):
    for x, reg in ((0, R0), (1, R1), (3, R3)):
        VERT[f"{nm}{x}"] = (reg, 512 * o, (lambda c, o=o, x=x: (o, (x + c) % 8)))
VERT["I1"] = (RB, 1536, lambda c: (3, 0))
VERT["I2"] = (RB, 1552, lambda c: (3, 1))
VERT["T1"] = (R4, 0, lambda c: (0, (c + 4) % 8))
VERT["T2"] = (RT2, 512, lambda c: (2 if c >= 4 else 1, (c + 4) % 8))
VERT["T3"] = (RT3, 1024, lambda c: (1 if c >= 4 else 2, (c + 4) % 8))
VERT["U"] = (RU, 0, lambda c: (3, 0) if c >= 4 else (0, c))
VERT["V"] = (RV, 0, lambda c: (3, 1) if c >= 4 else (0, c + 4))
STEPS = """A0A1 A0A3 A1A3 A0B0 A1B0 A3B0 A0B1 A3B1 B0B1 A0B3 A1B3 B0B3 B1B3
A0C3 A1C3 B0C3 B1C3 A1C0 B1C0 C0C3 A0C0 B0C0 A3C0 B3C0 C1C3 A3C1 B3C1 A0C1 B0C1 C0C1
I1A0 I1B0 I1C0 I2A0 I2B0 I2C0 T1B0 T1C0 T2B0 T3C0""".split()
if OPT.get("ord", 0) == 1:
    STEPS = """A0A1 A0A3 A1A3 A0B0 A1B0 A3B0 A0B1 A3B1 B0B1 A0B3 A1B3 B0B3 B1B3 T1B0
    A1C3 B1C3 A0C3 B0C3 T1C0 A1C0 B1C0 C0C3 A0C0 B0C0 A3C0 B3C0 C1C3 A3C1 B3C1 A0C1 B0C1 C0C1
    I1A0 I1B0 I1C0 I2A0 I2B0 I2C0 T2B0 T3C0""".split()
STEPS = [(s[:2], s[2:]) for s in STEPS] + [("U", "V")]
NS = len(STEPS)
seen = set()
for q, (a, b) in enumerate(STEPS):
    for c in range(8):
        if q == NS - 1 and c >= 5: continue
        e = frozenset((VERT[a][2](c), VERT[b][2](c)))
        assert len(e) == 2 and e not in seen
        seen.add(e)
assert len(seen) == 325 and NS == 41
FIRST = {}; LAST = {}
for q, ab in enumerate(STEPS):
    for v in ab:
        FIRST.setdefault(v, q); LAST[v] = q
NK = (NS + 1) // 2

def probe(E, n):
    if OPT["stamps"] == 3 and OPT["probe"] == n:
        lq = [x for x in E.lq if x.kind == "ds"]
        E("s_memrealtime s[42:43]\ns_waitcnt lgkmcnt(0)")
        E.lq = lq
def stamp(E, n):
    if OPT["stamps"] == 3:
        if n == 0: E("s_memrealtime s[40:41]\ns_mov_b32 s42, 0")
        probe(E, n)
        return
    if OPT["stamps"] == 4:
        if n in (0, 7): E(f"s_memrealtime s[{40+2*n}:{41+2*n}]")
        return
    if OPT["stamps"]:
        E(f"s_memrealtime s[{40+2*n}:{41+2*n}]")
        E(f"s_memtime s[{64+2*n}:{65+2*n}]")
        E("s_waitcnt lgkmcnt(0)")

I0 = P0
GI = INF
W32, BB, W16, HB, PB, XX, YY, TM = F, F + 8, F + 16, F + 24, F + 28, F + 32, F + 36, F + 40

U_, A_, VA, VB, X8, Y4, H16, K16, AW, AW16 = range(TM, TM + 10)
def head(E, first):
    if first:
        E(f"""s_load_dwordx2 s[4:5], s[0:1], 0
        s_load_dwordx2 s[20:21], s[0:1], 8
        s_load_dwordx8 s[8:15], s[0:1], 32
        s_load_dwordx2 s[16:17], s[0:1], 64
        v_readfirstlane_b32 s{S_W}, v0""")
    E(f"""v_lshrrev_b32 v{A_}, 4, v0
    s_mul_i32 s18, s2, 6656
    v_bfe_u32 v{U_}, v0, 2, 2
    v_mul_u32_u24 v{A_}, 104, v{A_}
    s_movk_i32 s19, 416
    v_add_u32 v{A_}, s18, v{A_}
    v_and_b32 v{X8}, 8, v0
    v_mad_u32_u24 v{VA}, v{U_}, 24, v{A_}
    v_and_b32 v{Y4}, 4, v0
    v_mad_u32_u24 v{VB}, v{X8}, s19, v{A_}
    v_add_u32 v{VB}, v{VB}, v{Y4}""")
    if first:
        E("""s_mov_b32 s22, 6400000
        s_mov_b32 s23, 0x00020000""")

def idx_loads(E, job):
    nt = " nt" if OPT["nt"] else ""
    if job == 0:
        E(f"""global_load_dwordx4 {r(I0,4)}, v{VA}, s[4:5]{nt}
        global_load_dwordx2 {r(I0+4,2)}, v{VA}, s[4:5] offset:16{nt}
        global_load_dword v{I0+6}, v{VB}, s[4:5] offset:96{nt}""")
    else:
        E(f"""global_load_dwordx4 {r(OFF1,4)}, v{VA}, s[4:5] offset:3328{nt}
        global_load_dwordx2 {r(OFF1+4,2)}, v{VA}, s[4:5] offset:3344{nt}""")

HU, L32 = TM + 13, TM + 14
def addr_w32(E):
    E(f"""v_lshrrev_b32 v{H16}, 1, v0
    v_and_b32 v{AW}, 19, v0
    v_and_b32 v{H16}, 16, v{H16}
    v_lshl_add_u32 v{AW}, v{AW}, 6, v{H16}
    v_lshl_add_u32 v{AW}, v{Y4}, 7, v{AW}
    v_lshl_add_u32 v{AW}, v{X8}, 5, v{AW}""")
def loads_w32(E):
    E(f"""global_load_dwordx4 {r(W32,4)}, v{AW}, s[8:9]
    global_load_dwordx4 {r(W32+4,4)}, v{AW}, s[8:9] offset:32
    global_load_dwordx4 {r(BB,4)}, v{H16}, s[10:11]
    global_load_dwordx4 {r(BB+4,4)}, v{H16}, s[10:11] offset:32""")
def loads_hp(E):
    E(f"""v_and_b32 v{K16}, 48, v0
    global_load_dwordx4 {r(HB,4)}, v{K16}, s[12:13]
    global_load_dwordx4 {r(PB,4)}, v{K16}, s[14:15]""")
def loads_w16(E):
    E(f"""v_and_b32 v{AW16}, 14, v0
    v_and_b32 v{A_}, 1, v0
    v_lshl_add_u32 v{AW16}, v{AW16}, 7, v{K16}
    v_lshl_add_u32 v{AW16}, v{A_}, 6, v{AW16}
    global_load_dwordx4 {r(W16,4)}, v{AW16}, s[8:9]
    global_load_dwordx4 {r(W16+4,4)}, v{AW16}, s[8:9] offset:128""")
def load_hu(E):
    E(f"""v_and_b32 v{L32}, 31, v0
    v_lshlrev_b32 v{HU}, 1, v{L32}
    s_waitcnt lgkmcnt(0)
    global_load_ushort v{HU}, v{HU}, s[12:13]""")

def lane_consts(E, u, y4, fast):
    t, l16, one = TM + 10, TM + 11, TM + 12
    z = D0
    E(f"""v_lshrrev_b32 v{t}, 6, v0
    s_movk_i32 s18, {CH}
    v_mul_u32_u24 v{RZ}, {WLDS}, v{t}
    v_and_b32 v{t}, 3, v0
    v_lshlrev_b32 v{CH16}, 4, v{t}
    v_mad_u32_u24 v{RW}, v{t}, s18, v{RZ}
    v_bfe_u32 v{t}, v0, 4, 2
    v_lshl_add_u32 v{RW}, v{u}, 4, v{RW}
    v_lshl_add_u32 v{RW}, v{t}, 7, v{RW}
    v_bfe_u32 v{t}, v0, 5, 1
    v_mad_u32_u24 v{RB}, v{t}, s18, v{RZ}
    v_and_b32 v{t}, 24, v0
    v_and_b32 v{l16}, 7, v0
    v_lshl_add_u32 v{RB}, v{t}, 4, v{RB}
    v_lshl_add_u32 v{R0}, v{l16}, 4, v{RB}
    v_xor_b32 v{t}, 4, v{l16}
    v_lshl_add_u32 v{R4}, v{t}, 4, v{RB}
    v_add_u32 v{t}, 1, v{l16}
    v_and_b32 v{t}, 7, v{t}
    v_lshl_add_u32 v{R1}, v{t}, 4, v{RB}
    v_add_u32 v{t}, 3, v{l16}
    v_and_b32 v{t}, 7, v{t}
    v_lshl_add_u32 v{R3}, v{t}, 4, v{RB}
    v_lshlrev_b32 v{t}, 7, v{y4}
    s_mov_b32 s{S_MB}, 0xf0f0f0f0
    v_add_u32 v{RT2}, v{R4}, v{t}
    s_mov_b32 s{S_MB+1}, s{S_MB}
    v_sub_u32 v{RT3}, v{R4}, v{t}
    v_add_u32 v{t}, 1536, v{RB}
    s_mov_b32 s{S_M0}, 0xe0e0e0e0
    v_cndmask_b32_e64 v{RU}, v{R0}, v{t}, {sp(S_MB)}
    v_add_u32 v{t}, 16, v{t}
    s_mov_b32 s{S_M0+1}, -1
    v_cndmask_b32_e64 v{RV}, v{R4}, v{t}, {sp(S_MB)}
    s_mov_b32 s{S_MPAR}, 0xaaaaaaaa""")
    if fast: E(f"v_mov_b32 v{RZ}, {PARZ-2048}")
    E(f"""v_add_u32 v{t}, 16, v{RZ}
    s_mov_b32 s{S_MPAR+1}, s{S_MPAR}
    v_cndmask_b32_e64 v{RM}, v{RZ}, v{t}, {sp(S_M0)}""")
    if not fast:
        E(f"""v_mov_b32 v{z}, 0xff800000
        v_mov_b32 v{z+1}, 0
        v_cndmask_b32_e64 v{z}, 0, v{z}, {sp(S_M0)}
        v_mov_b64 {r(z+2,2)}, 0
        ds_write_b128 v{RM}, {r(z,4)} offset:2048""")
    idv = (127 + (ESH if fast else 0)) << 7
    E(f"""v_mov_b32 v{t}, 0x4444
    v_mov_b32 v{IDX}, 0xeeee
    s_mov_b32 s{S_MT}, 0xcccccccc
    v_cndmask_b32_e64 v{IDX}, v{t}, v{IDX}, {sp(S_MPAR)}
    v_mov_b32 v{t}, {idv}
    s_mov_b32 s{S_MT+1}, s{S_MT}
    v_lshlrev_b32 v{one}, 16, v{t}
    s_mov_b32 s{S_M0}, 3
    v_cndmask_b32_e64 v{one}, v{t}, v{one}, {sp(S_MPAR)}
    s_mov_b32 s{S_M0+1}, 48""")
    for R in range(8):
        sh = 8 * (R // 2) + 2 * (R % 2)
        m = S_M0
        if sh:
            m = S_M1 if R % 2 else S_T
            E(f"s_lshl_b64 {sp(m)}, {sp(S_M0)}, {sh}")
        E(f"v_cndmask_b32_e64 v{AID+R}, 0, v{one}, {sp(m)}")

def gather(E, idx, dst, lvl=3):
    E(f"buffer_load_dwordx4 {r(dst,4)}, v{idx}, s[20:23], 0 offen" + (" nt" if OPT["gnt"] >= lvl else ""))

def gathers0(E, which):
    for t in which:
        i, d = (I0 + t, RAW + 4 * t) if t < 6 else (I0 + 6, GI)
        E.wait(f"v{i}")
        E(f"v_lshl_add_u32 v{i}, v{i}, 6, v{CH16}")
        gather(E, i, d, 1 if t < 4 else 2)
def gathers1(E):
    E.wait(r(OFF1, 6))
    for t in range(6):
        E(f"v_lshl_add_u32 v{OFF1+t}, v{OFF1+t}, 6, v{CH16}")
        gather(E, OFF1 + t, RAW + 4 * t)
PARQ = [W, W+4, C, C+4, C+8, C+12, AH, ALS, ALS+4]

def spread_rows(E, dst, val, mask):
    E(f"s_mov_b32 s{S_M0}, {mask}\ns_mov_b32 s{S_M0+1}, s{S_M0}")
    for g in range(4):
        m = S_M0
        if g:
            m = S_M1 if g % 2 else S_T
            E(f"s_lshl_b64 {sp(m)}, {sp(S_M0)}, {4*g}")
        for j in range(2):
            E(f"v_cndmask_b32_e64 v{dst+2*g+j}, 0, v{val+j}, {sp(m)}")

def params_exact(E):
    D1 = D0 + 16
    E.wait(r(W32, 8))
    E(f"v_mfma_f32_32x32x16_bf16 {r(D1,16)}, {r(W32,4)}, {r(AID,4)}, 0")
    E(f"v_mfma_f32_32x32x16_bf16 {r(D1,16)}, {r(W32+4,4)}, {r(AID+4,4)}, {r(D1,16)}")
    E.wait(r(BB, 8))
    E(f"v_mfma_f32_32x32x16_bf16 {r(C,16)}, {r(AID,4)}, {r(BB,4)}, 0")
    E(f"v_mfma_f32_32x32x16_bf16 {r(C,16)}, {r(AID+4,4)}, {r(BB+4,4)}, {r(C,16)}")
    E.wait(r(HB, 8))
    vh, vp = TM + 14, TM + 16
    for j in range(2):
        E(f"v_cndmask_b32_e64 v{vh+j}, v{HB+2*j}, v{HB+2*j+1}, {sp(S_MPAR)}")
        E(f"v_cndmask_b32_e64 v{vp+j}, v{PB+2*j}, v{PB+2*j+1}, {sp(S_MPAR)}")
    spread_rows(E, AH, vh, "0x00030003")
    for k in range(8):
        E(f"v_cvt_pk_bf16_f32 v{W+k}, v{D1+2*k}, v{D1+2*k+1}")
    spread_rows(E, ALS, vp, "0x000c000c")

def chain_ops(a, d):
    return [f"v_add3_u32 v{a}, v{d}, v{d+1}, v{d+2}", f"v_sad_u32 v{a}, v{a}, v{d+3}, v{d+4}",
            f"v_add3_u32 v{a}, v{a}, v{d+5}, v{d+6}", f"v_add3_u32 v{a}, v{a}, v{d+7}, v{d+8}", f"v_add3_u32 v{a}, v{a}, v{d+9}, v{d+10}",
            f"v_sad_u32 v{a}, v{a}, v{d+11}, v{d+12}", f"v_add3_u32 v{a}, v{a}, v{d+13}, v{d+14}", f"v_xad_u32 v{a}, v{d+15}, v{XM}, v{a}"]
VBITS = (127 + VEXP) << 23
assert (127 + VEXP) % 2 == 1
def chain_model(y, xm):
    M = 0xffffffff
    a = (y[0] + y[1] + y[2]) & M; a = (abs(a - y[3]) + y[4]) & M
    a = (a + sum(y[5:11])) & M; a = (abs(a - y[11]) + y[12]) & M
    a = (a + y[13] + y[14]) & M
    return a, (((y[15] ^ xm) + a) & M)
XTOP = {}
for t1 in (0, 1):
    for t2 in (0, 1):
        neg = ([0, 3] if t1 != t2 else []) + ([] if t2 else [11])
        base = [VBITS | (0x80000000 if k in neg else 0) for k in range(16)]
        a, _ = chain_model(base, 0)
        top = (((-a - 0x800000) >> 24) & 0xff) ^ (VBITS >> 24)
        XTOP[t1, t2] = top
        for up in (0, 1):
            sg = [t1]*3 + [1-t1] + [t2]*7 + [1-t2] + [1]*3 + [up]
            xm = (top << 24) | (0 if up else 0xffffff)
            import random, itertools
            rnd = random.Random(1)
            cases = [[rnd.choice((-(1 << 23), (1 << 22), rnd.randint(-(1 << 23), 1 << 22))) for _ in range(16)] for _ in range(3000)]
            cases += [[(lo if g else hi) for g in sg] for lo, hi in itertools.product((-(1 << 23), 1 << 22), repeat=2)]
            for dv in cases:
                got = chain_model([b + x for b, x in zip(base, dv)], xm)[1]
                want = sum(x if g else -x for x, g in zip(dv, sg)) - (0 if up else 1)
                assert got == want & 0xffffffff

def sign_split(E, plus, n, mu, muval):
    E.wait(f"v{HU}")
    E(f"""v_cmp_lt_u32 vcc, 0x7fff, v{HU}
    s_bcnt1_i32_b32 s{n}, vcc_lo
    s_not_b32 s{plus}, vcc_lo
    s_sub_u32 s18, 32, s{n}
    s_mov_b32 s{mu}, {f32(-muval)}
    s_cmp_ge_u32 s{n}, 16
    s_cselect_b32 s{plus}, vcc_lo, s{plus}
    s_cselect_b32 s{n}, s{n}, s18
    s_cselect_b32 s{mu}, {f32(muval)}, s{mu}""")

def params_w(E):
    D1 = D0 + 16
    PLUS, N, SMU, R0_, R1_, SL0, SL1, NG0, NG1, X0, X1, HI = 84, 85, 86, 87, 88, 89, 90, 91, 92, 93, 94, 82
    bel, ku, t, ks, sel, val, v1, v2, vv, l1, mx = range(TM + 15, TM + 26)
    PM = W16
    E(f"v_bfm_b32 v{bel}, v{L32}, 0")
    sign_split(E, PLUS, N, SMU, 2.0 ** -USH)
    def key(dst, m):
        E(f"""v_and_b32 v{t}, s{m}, v{bel}
        s_mov_b32 s{S_T}, s{m}
        v_bcnt_u32_b32 v{dst}, v{t}, 0
        s_mov_b32 s{S_T+1}, s{m}
        v_sub_u32 v{t}, v{L32}, v{dst}
        v_add_u32 v{t}, s{N}, v{t}
        v_cndmask_b32_e64 v{dst}, v{t}, v{dst}, {sp(S_T)}""")
    key(ku, PLUS)
    E(f"""v_and_or_b32 v{ku}, v0, 32, v{ku}
    v_lshl_or_b32 v{val}, v{HU}, 16, v{L32}
    v_lshlrev_b32 v{ku}, 2, v{ku}
    ds_permute_b32 v{val}, v{ku}, v{val}
    s_mov_b32 s{X1}, {XTOP[0,0] | XTOP[1,0] << 8}
    s_movk_i32 s{X0}, {XTOP[0,1]}
    s_cmp_gt_u32 s{N}, 28
    s_cselect_b32 s{SMU}, -1, s{SMU}
    s_cmp_gt_u32 s{N}, 22
    s_cselect_b32 s18, 22, 16
    s_cselect_b32 s{SL1}, 0x07070f00, 0
    s_cselect_b32 s{NG1}, 0, 0x80000
    s_cselect_b32 s{X1}, {XTOP[0,1] | XTOP[1,1] << 8}, s{X1}
    s_cselect_b32 s19, 9, 0
    s_sub_u32 s{R1_}, s{N}, s18
    s_or_b32 s{SL1}, s{SL1}, s{NG1}
    s_min_u32 s{R0_}, s{R1_}, 3
    s_or_b32 s{SL1}, s{SL1}, 0x07000000
    s_sub_u32 s{R1_}, s{R1_}, s{R0_}
    s_bitcmp1_b32 s{R0_}, 1
    s_cselect_b32 s{SL0}, 7, 8
    s_cselect_b32 s{NG0}, 0, 9
    s_cselect_b32 s{X0}, {XTOP[1,1]}, s{X0}
    s_or_b32 s{SL0}, s{SL0}, 0x07070f00
    s_lshl_b32 s{X0}, s{X0}, 24
    s_bitcmp1_b32 s{R1_}, 1
    s_cselect_b32 s18, 7, 8
    s_cselect_b32 s{HI}, 9, 0
    s_cselect_b32 s{HI+1}, 16, 24
    s_or_b32 s{SL1}, s{SL1}, s18
    s_xor_b32 s19, s19, s{HI}
    s_lshl_b32 s{X1}, s{X1}, s{HI+1}
    s_or_b32 s{NG1}, s{NG1}, s19
    s_and_b32 s{X1}, s{X1}, 0xff000000
    s_bitcmp1_b32 s{R0_}, 0
    s_cselect_b32 s18, 0x08000000, 0
    s_cselect_b32 s19, 0, 0xffffff
    s_or_b32 s{SL0}, s{SL0}, s18
    s_or_b32 s{X0}, s{X0}, s19
    s_bitcmp1_b32 s{R1_}, 0
    s_cselect_b32 s18, 0x08000000, 0
    s_cselect_b32 s19, 0, 0xffffff
    s_or_b32 s{SL1}, s{SL1}, s18
    s_or_b32 s{X1}, s{X1}, s19
    s_lshl4_add_u32 s{SL0}, s{SL1}, s{SL0}""")
    key(ks, SL0)
    E(f"""s_lshl4_add_u32 s{S_M1}, s{NG1}, s{NG0}
    v_lshlrev_b32 v{ks}, 2, v{ks}
    s_mov_b32 s{S_M1+1}, s{S_M1}""")
    E.wait(f"v{val}")
    E(f"""ds_bpermute_b32 v{val}, v{ks}, v{val}
    s_mov_b32 s{HI}, 0
    s_mov_b32 s{HI+1}, -1
    v_mov_b32 v{XM}, s{X0}
    v_mov_b32 v{t}, s{X1}
    v_mov_b32 v{v1}, s{NG0}
    v_cndmask_b32_e64 v{XM}, v{XM}, v{t}, {sp(HI)}
    v_mov_b32 v{t}, s{NG1}
    v_mov_b32 v{vv}, {VBITS}
    v_cndmask_b32_e64 v{t}, v{v1}, v{t}, {sp(HI)}
    v_lshrrev_b32 v{ks}, 2, v{H16}
    v_lshl_or_b32 v{v1}, v{t}, 31, v{vv}
    v_lshrrev_b32 v{t}, 19, v{t}
    v_lshl_or_b32 v{v2}, v{t}, 31, v{vv}""")
    E.wait(f"v{val}")
    E(f"""v_bfe_u32 v{sel}, v{val}, 1, 4
    v_lshlrev_b32 v{ku}, 4, v{val}
    v_or_b32 v{t}, 0x80000000, v{val}
    v_and_b32 v{val}, 0x7fffffff, v{val}
    v_sub_u32 v{sel}, v{sel}, v{ks}
    v_cndmask_b32_e64 v{val}, v{t}, v{val}, {sp(S_M1)}
    v_lshrrev_b32 v{val}, 16, v{val}
    v_lshlrev_b32 v{val}, v{ku}, v{val}""")
    ms = [S_M0, S_M1, S_T, HI]
    for h in range(2):
        for j in range(4): E(f"v_cmp_eq_u32_e64 {sp(ms[j])}, {8*h+j}, v{sel}")
        for j in range(4): E(f"v_cndmask_b32_e64 v{PM+4*h+j}, 0, v{val}, {sp(ms[j])}")
    E.wait(r(W32, 8))
    E(f"v_mfma_f32_32x32x16_bf16 {r(D1,16)}, {r(W32,4)}, {r(PM,4)}, 0")
    E(f"v_mfma_f32_32x32x16_bf16 {r(D1,16)}, {r(W32+4,4)}, {r(PM+4,4)}, {r(D1,16)}")
    E.wait(r(BB, 8))
    E(f"v_mfma_f32_32x32x16_bf16 {r(C,16)}, {r(PM,4)}, {r(BB,4)}, 0")
    E(f"v_mfma_f32_32x32x16_bf16 {r(C,16)}, {r(PM+4,4)}, {r(BB+4,4)}, {r(C,16)}")
    E(f"""s_mov_b32 s18, {f32(LOG2E * 2.0 ** (USH - 2 * ESH))}
    s_mov_b32 s19, {f32(2.0 ** -6 / LOG2E)}
    s_mov_b32 s{X0}, {f32(0.99 * 896 / 2.0 ** (16 - 2 * ESH) / LOG2E)}
    s_mov_b32 s{X1}, {f32(0.99 * 256 / LOG2E)}
    s_mov_b32 s{SL0}, {f32(LOG2E * 2.0 ** USH)}""")
    E(f"v_cmp_le_f32_e64 vcc, s19, |v{D1}|")
    for k in range(8):
        if k == 0: E(f"v_add_f32_e64 v{l1}, |v{D1}|, |v{D1+1}|")
        else: E(f"v_add_f32_e64 v{l1}, |v{D1+2*k}|, v{l1}\nv_add_f32_e64 v{l1}, |v{D1+2*k+1}|, v{l1}")
        E(f"v_mul_f32 v{D1+2*k}, s18, v{D1+2*k}\nv_mul_f32 v{D1+2*k+1}, s18, v{D1+2*k+1}")
        if k == 0: E(f"s_cmp_eq_u64 vcc, 0\ns_cselect_b32 s{SMU}, -1, s{SMU}")
        E(f"v_cvt_pk_f16_f32 v{W+k}, v{D1+2*k}, v{D1+2*k+1}")
        if k % 4 == 3: E(f"ds_write_b128 v{T2}, {r(W+k-3,4)} offset:{1024*(k//4)}")
    E(f"v_cmp_nlt_f32_e64 vcc, v{l1}, s{X0}")
    for k in range(8):
        if k == 0: E(f"v_add_f32_e64 v{mx}, |v{C}|, |v{C+1}|")
        else: E(f"v_add_f32_e64 v{mx}, |v{C+2*k}|, v{mx}\nv_add_f32_e64 v{mx}, |v{C+2*k+1}|, v{mx}")
        if k == 0: E(f"s_cmp_eq_u64 vcc, 0\ns_cselect_b32 s{SMU}, s{SMU}, -1")
        for x in (2*k, 2*k+1):
            E(f"v_fma_f32 v{C+x}, v{C+x}, s{SL0}, v{v1 if x in (0, 3) else v2 if x == 11 else vv}")
        if k % 2 == 1: E(f"ds_write_b128 v{T2}, {r(C+2*k-2,4)} offset:{1024*(2+k//2)}")
    E(f"""v_cmp_nlt_f32_e64 vcc, v{mx}, s{X1}
    s_cmp_eq_u64 vcc, 0
    s_cselect_b32 s{SMU}, s{SMU}, -1
    v_mov_b32 v{MU}, s{SMU}
    ds_write_b128 v{T2}, {r(XM,4)} offset:{1024*6}""")

def params_l(E):
    PLUS, N, SG = 84, 85, 86
    vp, pf, kk, l1, t, z = TM + 15, TM + 18, TM + 22, TM + 23, TM + 17, D0
    sign_split(E, PLUS, N, SG, 1.0)
    E.wait(r(PB, 4))
    for j in range(2):
        E(f"v_cndmask_b32_e64 v{vp+j}, v{PB+2*j}, v{PB+2*j+1}, {sp(S_MPAR)}")
    E.wait(r(W16, 8))
    E(f"v_mfma_f32_16x16x32_bf16 {r(XX,4)}, {r(W16,4)}, {r(HB,4)}, 0")
    E(f"v_mfma_f32_16x16x32_bf16 {r(YY,4)}, {r(W16+4,4)}, {r(HB,4)}, 0")
    for j in range(2):
        E(f"v_lshlrev_b32 v{pf+2*j}, 16, v{vp+j}")
        E(f"v_and_b32 v{pf+2*j+1}, 0xffff0000, v{vp+j}")
    E(f"""v_mov_b32 v{kk}, {f32(-LOG2E * 2.0 ** (USH - 2 * ESH))}
    v_mov_b32 v{t}, {f32(-LOG2E * 2.0 ** (-2 * ESH))}
    v_mul_f32 v{kk}, s{SG}, v{kk}
    v_mov_b32 v{z+1}, {f32(-1.5 * 2.0 ** (VEXP - USH))}
    v_cndmask_b32_e64 v{kk}, v{kk}, v{t}, {sp(S_MPAR)}
    v_mov_b32 v{t}, {f32(2.0 ** PSH)}
    v_mov_b32 v{z}, {f32(1.5 * 2.0 ** VEXP)}
    v_cndmask_b32_e64 v{kk}, v{kk}, v{t}, {sp(S_MT)}
    v_mov_b64 {r(z+2,2)}, 0""")
    for k in range(4):
        E(f"v_cndmask_b32_e64 v{XX+k}, v{XX+k}, v{YY+k}, {sp(S_MPAR)}")
        E(f"v_cndmask_b32_e64 v{XX+k}, v{XX+k}, v{pf+k}, {sp(S_MT)}")
    E(f"""v_add_f32_e64 v{l1}, |v{XX}|, |v{XX+1}|
    v_add_f32_e64 v{t}, |v{XX+2}|, |v{XX+3}|
    s_mov_b32 s18, {f32(0.99 * 1792 / 2.0 ** (16 - 2 * ESH) / LOG2E)}
    v_add_f32 v{l1}, v{l1}, v{t}
    s_mov_b32 s19, {f32(2.0 ** -10)}
    v_mov_b32 v{t}, v{l1}
    v_mul_f32 v{XX}, v{kk}, v{XX}
    v_mul_f32 v{XX+1}, v{kk}, v{XX+1}
    v_permlane32_swap_b32 v{l1}, v{t}
    v_add_f32 v{l1}, v{l1}, v{t}
    v_mov_b32 v{t}, v{l1}
    v_mul_f32 v{XX+2}, v{kk}, v{XX+2}
    v_mul_f32 v{XX+3}, v{kk}, v{XX+3}
    v_permlane16_swap_b32 v{l1}, v{t}
    v_add_f32 v{l1}, v{l1}, v{t}
    v_cvt_pk_f16_f32 v{vp}, v{XX}, v{XX+1}
    v_cmp_nlt_f32_e64 vcc, v{l1}, s18
    v_cmp_le_f32_e64 {sp(S_M1)}, s19, v{l1}
    v_cvt_pk_f16_f32 v{vp+1}, v{XX+2}, v{XX+3}
    s_andn2_b64 vcc, vcc, {sp(S_MT)}
    s_cselect_b32 s{SG}, -1, s{SG}
    s_and_b64 vcc, {sp(S_M1)}, {sp(S_MT)}
    s_cselect_b32 s{SG}, s{SG}, -1
    v_mov_b32 v{t}, 0xff800000
    v_mul_f32 v{z+1}, s{SG}, v{z+1}
    v_cmp_eq_u32 vcc, v{RM}, v{RZ}""")
    spread_rows(E, ALS, vp, "0x000f000f")
    E(f"""v_cndmask_b32_e64 v{z+1}, v{t}, v{z+1}, vcc
    ds_write_b128 v{T2}, {r(ALS,4)} offset:{1024*7}
    ds_write_b128 v{T2}, {r(ALS+4,4)} offset:{1024*8}
    ds_write_b128 v{RM}, {r(z,4)} offset:2048""")

PRE = ["A0", "A1", "A3"]
def slot_reg(s): return F + 8 * s
def rd(E, v, s, t):
    reg, off, _ = VERT[v]
    E(f"ds_read_b128 {r(slot_reg(s)+4*t,4)}, v{reg} offset:{off + 2*CH*t}")
def zinit(E, k):
    E(f"ds_read_b128 {r(SD+4*(k%3),4)}, v{RM if k == NK-1 else RZ} offset:2048")

def mm(E, d, g, hi):
    E.wait(r(g, 4))
    E(f"v_mfma_f32_32x32x16_bf16 {r(d,16)}, {r(AID+4*hi,4)}, {r(g,4)}, {r(d,16) if hi else 0}")
def cv(dst, d, ks):
    return [f"v_cvt_pk_f16_f32 v{dst+k}, v{d+2*k}, v{d+2*k+1}" for k in ks]
def wr(E, src, off):
    E.wait(r(src, 4))
    E(f"ds_write_b128 v{RW}, {r(src,4)} offset:{off}")

def conv(E, job, fast):
    D1 = D0 + 16; P1 = P0 + 8
    if fast:
        mm(E, D0, RAW, 0); mm(E, D0, RAW+4, 1)
        if job == 0: probe(E, 13)
        if job: wr(E, INF, 1536 - 32)
        zinit(E, 0)
        E(f"s_mov_b32 s19, {f32(0.125)}")
        E("\n".join(cv(P1, D0, range(4)))); wr(E, P1, 0)
        E("\n".join(cv(P1, D0, range(4, 8)))); wr(E, P1+4, 64)
    else:
        zinit(E, 0)
        wr(E, RAW, 0); wr(E, RAW+4, 64)
        wr(E, RAW+8, 512); wr(E, RAW+12, 576)
        wr(E, INF, 1536 - 32 * job)
        wr(E, RAW+16, 1024); wr(E, RAW+20, 1088)
    for s, v in enumerate(PRE):
        rd(E, v, s, 0); rd(E, v, s, 1)
    if fast:
        E(f"v_cmp_le_f32_e64 vcc, s19, |v{D0}|")
        mm(E, D1, RAW+8, 0)
        E(f"""s_and_b32 s18, vcc_lo, 0xffff
        s_cselect_b32 s{S_FLAG}, s{S_FLAG}, 1
        s_lshr_b32 s18, vcc_lo, 16
        s_cselect_b32 s{S_FLAG}, s{S_FLAG}, 1
        s_and_b32 s18, vcc_hi, 0xffff
        s_cselect_b32 s{S_FLAG}, s{S_FLAG}, 1""")
        mm(E, D1, RAW+12, 1)
        E(f"""s_lshr_b32 s18, vcc_hi, 16
        s_cselect_b32 s{S_FLAG}, s{S_FLAG}, 1""")
    E(f"s_cmp_lg_u32 s{S_JOB}, 0")

EV = [RAW + k for k in range(21)]
SV = [RAW+21, RAW+22, RAW+23] + [AID + k for k in range(8)] + [SPARE + k for k in range(10)]
def main(E, fast):
    slot = {v: s for s, v in enumerate(PRE)}
    free = list(range(len(PRE), NF))
    todo = sorted([v for v in VERT if v not in PRE], key=lambda v: FIRST[v])
    half = []
    zq = list(range(1, NK))
    zfree = {1: -9, 2: -9}
    ty = "f16" if fast else "bf16"
    def pk(q, ks):
        if not 0 <= q < NS: return []
        a, b = (slot_reg(slot[v]) for v in STEPS[q]); P = P0 + 8 * (q % 2)
        if fast: return [f"v_pk_mul_f16 v{P+k}, v{a+k}, v{b+k}" for k in ks]
        return [f"""v_lshlrev_b32 v{T0}, 16, v{a+k}
                v_lshlrev_b32 v{T1}, 16, v{b+k}
                v_mul_f32 v{T0}, v{T0}, v{T1}
                v_and_b32 v{T1}, 0xffff0000, v{a+k}
                v_and_b32 v{T2}, 0xffff0000, v{b+k}
                v_mul_f32 v{T1}, v{T1}, v{T2}
                v_cvt_pk_bf16_f32 v{P+k}, v{T0}, v{T1}""" for k in ks]
    def cvt(q, ks):
        if fast and q == -1: return cv(Q, D0 + 16, ks)
        if not 0 <= q < NS: return []
        D = D0 + 16 * (q % 2)
        if fast: return [chain_ops(VA0 + q % 2, D)[k] for k in ks]
        return [f"v_cvt_pk_bf16_f32 v{Q+k}, v{D+2*k}, v{D+2*k+1}\nv_pk_max_i16 v{Q+k}, v{Q+k}, 0" for k in ks]
    CQ, JQ = OPT["cq"], OPT["jq"]
    DC = slot_reg(NF - 2)
    ready = {v: (CQ + 3 if v[0] == "C" or v in ("T2", "T3") else JQ + 1 if v[0] in "IUV" else 1 if v[0] == "B" else -9) if fast else -9 for v in VERT}
    held = [NF - 2, NF - 1] if fast else []
    free = [x for x in free if x not in held]
    wq = []
    def shadow(q):
        shadow_read(q)
        if wq: wr(E, *wq.pop(0))
    def shadow_read(q):
        cand = []
        if zq and zfree.get(zq[0], 99) <= q: cand.append((2 * zq[0] - 0.5, "z"))
        if half: cand.append((FIRST[half[0]] - 1, "h"))
        elif todo and free and ready[todo[0]] <= q: cand.append((FIRST[todo[0]] - 1, "f"))
        if not cand: return
        what = min(cand)[1]
        if what == "z": zinit(E, zq.pop(0))
        elif what == "h":
            v = half.pop(0); rd(E, v, slot[v], 1)
        else:
            v = todo.pop(0); slot[v] = free.pop(0); rd(E, v, slot[v], 0); half.append(v)
    def soft(k, part):
        if not 0 <= k < NK: return []
        sd = SD + 4 * (k % 3)
        if not fast:
            return [f"v_add_f32 v{EV[k]}, v{sd}, v{sd+1}", f"v_add_f32 v{SV[k]}, v{sd+2}, v{sd+3}"] if part == 0 else []
        w = SUM if k == 0 else T0
        if part == 0:
            return [f"v_permlane32_swap_b32 v{VA0}, v{VA0+1}", f"v_add3_u32 v{T0}, v{VA0}, v{VA0+1}, v{sd}", f"v_fmac_f32 v{sd+1}, v{T0}, v{MU}"]
        ex = f"v_exp_f32 v{w}, v{sd+1}"
        if k == 0 and part == 2: return []
        if k == 0: return [ex, f"v_mul_f32 v{ACC}, v{w}, v{sd+2}", f"v_fmac_f32 v{ACC}, v{w}, v{sd+3}"]
        if part == 2: return [f"v_add_f32 v{SUM}, v{SUM}, v{w}"]
        return [ex, f"v_fmac_f32 v{ACC}, v{w}, v{sd+2}", f"v_fmac_f32 v{ACC}, v{w}, v{sd+3}"]
    def out(L):
        for x in L: E(x)
    E.wait(r(slot_reg(0), 16))
    out(pk(0, range(8)))
    segs = []
    def urgent(q):
        dl = []
        if zq and zfree.get(zq[0], 99) <= q: dl.append(2 * zq[0])
        if half: dl.append(FIRST[half[0]] - 1)
        n = 0
        for v in todo[:3]:
            if ready[v] <= q and n < len(free): dl += [FIRST[v] - 1] * 2; n += 1
        return any(d - OPT["lead"] <= q + k for k, d in enumerate(sorted(dl)))
    for q in range(NS + 1):
        live = q < NS
        P = P0 + 8 * (q % 2); D = D0 + 16 * (q % 2)
        extra = fast and q in (CQ, CQ + 1)
        if live: E(f"v_mfma_f32_32x32x16_{ty} {r(D,16)}, {r(W,4)}, {r(P,4)}, {r(C,16)}")
        if fast and urgent(q): shadow_read(q)
        out(cvt(q - 1, range(6)))
        if live: E(f"v_mfma_f32_32x32x16_{ty} {r(D,16)}, {r(W+4,4)}, {r(P+4,4)}, {r(D,16)}")
        if fast and q == 0: wr(E, Q, 512)
        nxt = [r(slot_reg(slot[v]), 8) for v in STEPS[q + 1]] if q + 1 < NS else []
        assert not live or q // 2 not in zq
        assert q + 1 >= NS or not set(STEPS[q + 1]) & set(half)
        p = pk(q + 1, range(8))
        SLq = f"v_smfmac_f32_16x16x64_{ty} {r(SD+4*((q//2)%3),4)}, {r(ALS+4*(q%2),4)}, {r(P,8)}, v{IDX}"
        if live: E.wait(r(SD + 4 * ((q // 2) % 3), 4), *nxt)
        if not fast:
            so = soft((q - 3) // 2, 0) if q % 2 else []
            out(so); out(cvt(q - 1, range(6, 8))); out(p[:4])
            if q % 2 and q >= 3: zfree[(q - 3) // 2 + 3] = q
            if live: E(SLq)
            shadow(q); out(p[4:6])
            if q >= 1: E(f"v_smfmac_f32_16x16x64_bf16 {r(SD+4*(((q-1)//2)%3),4)}, {r(AH+4*((q-1)%2),4)}, {r(Q,8)}, v{IDX}")
            shadow(q); out(p[6:])
        else:
            s0 = soft((q - 2) // 2, 0) if q % 2 == 0 else []
            s1 = soft((q - 3) // 2, 1) if q % 2 else []
            out(s1[:1] if q % 2 else soft((q - 4) // 2, 2)); out(cvt(q - 1, range(6, 8)))
            if q == 0: wq.append((Q + 4, 576))
            if s1:
                V = s1[1:] + p; n1 = 2 if extra else 4
                zfree[(q - 3) // 2 + 3] = q
            else:
                V = p[:2] + s0[:1] + p[2:4] + s0[1:] + p[4:]; n1 = 3 if extra else 4
            if q == CQ + 2:
                out(cv(RAW, DC, range(8))); wr(E, RAW, 1024); wq.append((RAW + 4, 1088)); free += held
            out(V[:n1])
            if live: E(SLq)
            if q == CQ: E("s_waitcnt vmcnt(0)")
            else: shadow(q)
            if extra:
                out(V[n1:n1+1]); n1 += 1
                mm(E, DC, RAW + 16 + 4 * (q - CQ), q - CQ)
            out(V[n1:])
        if fast and q == JQ:
            E("s_cbranch_scc1 L_skip")
            segs.append(E.take()); lq = list(E.lq)
            mm(E, RAW, GI, 0)
            for t in range(6): E(f"v_lshl_add_u32 v{OFF1+t}, v{OFF1+t}, 6, v{CH16}")
            for t in (4, 5): gather(E, OFF1 + t, RAW + 4 * t)
            out(cv(INF, RAW, range(4)))
            for t in range(4): gather(E, OFF1 + t, RAW + 4 * t)
            wr(E, INF, 1536)
            segs.append(E.take()); E.lq = lq
            E("L_skip:")
        if q + 1 < NS:
            for v in STEPS[q + 1]:
                if LAST[v] == q + 1: free.append(slot[v])
    assert not todo and not half and not zq
    for x in (soft(NK - 2, 2) + soft(NK - 1, 0) + soft(NK - 1, 1) + soft(NK - 1, 2)): E(x)
    if not fast:
        E(f"v_max3_f32 v{T0}, v{EV[0]}, v{EV[1]}, v{EV[2]}")
        for k in range(3, NK, 2): E(f"v_max3_f32 v{T0}, v{T0}, v{EV[k]}, v{EV[k+1]}")
        for ctl in ("quad_perm:[1,0,3,2]", "quad_perm:[2,3,0,1]", "row_half_mirror"):
            E(f"v_max_f32_dpp v{T0}, v{T0}, v{T0} {ctl} row_mask:0xf bank_mask:0xf")
        E(f"v_mov_b32 v{T1}, v{T0}\nv_permlane32_swap_b32 v{T0}, v{T1}\nv_max_f32 v{T0}, v{T0}, v{T1}")
        E(f"v_mov_b32 v{SUM}, 0\nv_mov_b32 v{ACC}, 0")
        for k in range(NK):
            E(f"""v_sub_f32 v{T1}, v{EV[k]}, v{T0}
            v_mul_f32 v{T1}, {f32(LOG2E)}, v{T1}
            v_exp_f32 v{T1}, v{T1}
            v_add_f32 v{SUM}, v{SUM}, v{T1}
            v_fmac_f32 v{ACC}, v{T1}, v{SV[k]}""")
    return segs + [E.take()]

def final(E, fast):
    E(f"""v_permlane32_swap_b32 v{ZS}, v{SUM}
    v_permlane32_swap_b32 v{AS}, v{ACC}
    v_add_f32 v{SUM}, v{ZS}, v{SUM}
    v_add_f32 v{ACC}, v{AS}, v{ACC}
    v_lshrrev_b32 v{T0}, 6, v0""")
    fill = [f"v_bfe_u32 v{T1}, v0, 3, 2", f"v_lshl_add_u32 v{T0}, v{T0}, 2, v{T1}", f"v_and_b32 v{T1}, 32, v0"]
    for ctl in ("quad_perm:[1,0,3,2]", "quad_perm:[2,3,0,1]", "row_half_mirror"):
        E(f"v_add_f32_dpp v{SUM}, v{SUM}, v{SUM} {ctl} row_mask:0xf bank_mask:0xf")
        E(f"v_add_f32_dpp v{ACC}, v{ACC}, v{ACC} {ctl} row_mask:0xf bank_mask:0xf")
        E(fill.pop(0))
    E(f"""v_rcp_f32 v{ZS}, v{SUM}
    s_lshl_b32 s18, s2, 6
    v_add3_u32 v{T0}, v{T0}, v{T1}, s18""")
    if fast:
        lo, hi = (127 - 64) << 23, (127 + 100) << 23
        E(f"""v_mul_f32 v{ACC}, {f32(2.0**(-PSH-2*ESH))}, v{ACC}
        v_subrev_u32 v{SUM}, {lo}, v{SUM}
        v_mul_f32 v{ACC}, v{ACC}, v{ZS}
        v_cmp_lt_u32 vcc, {hi-lo}, v{SUM}
        s_movk_i32 s18, 0x207
        v_cmp_class_f32_e64 {sp(S_T)}, v{ACC}, s18
        v_lshlrev_b32 v{T0}, 1, v{T0}
        v_cvt_pk_bf16_f32 v{ACC}, v{ACC}, v{ACC}
        s_or_b64 {sp(S_T)}, vcc, {sp(S_T)}
        s_cbranch_scc1 L_slow
        s_cmp_lg_u32 s{S_FLAG}, 0
        s_cbranch_scc1 L_slow""")
    else:
        E(f"""v_mul_f32 v{ACC}, v{ACC}, v{ZS}
        v_lshlrev_b32 v{T0}, 1, v{T0}
        v_cvt_pk_bf16_f32 v{ACC}, v{ACC}, v{ACC}""")
    E(f"""s_mov_b32 exec_lo, 0x01010101
    s_mov_b32 exec_hi, 0x01010101
    global_store_short v{T0}, v{ACC}, s[16:17]{["", " sc0 sc1", " nt", " sc1"][OPT["stpol"]]}""")

def dump_stamps(E, n):
    if OPT["stamps"] == 3:
        E(f"""v_readfirstlane_b32 s18, v0
        s_sub_u32 s19, s42, s40
        s_lshl_b32 s19, s19, 3
        s_add_u32 s19, s19, 3000
        s_cmp_lg_u32 s18, {64*OPT.get('ampw',0)}
        s_cbranch_scc1 L_end
        s_cmp_{'lg' if OPT.get('ampwg',100) >= 0 else 'eq'}_u32 s2, {OPT.get('ampwg',100)}
        s_cbranch_scc1 L_end
        L_spin:
        s_memrealtime s[4:5]
        s_waitcnt lgkmcnt(0)
        s_sub_u32 s4, s4, s40
        s_cmp_lt_u32 s4, s19
        s_cbranch_scc1 L_spin""")
        return
    if OPT["stamps"] == 2:
        E("s_load_dwordx2 s[4:5], s[0:1], 72\ns_mov_b64 exec, 1\nv_mov_b32 v1, 0\ns_waitcnt lgkmcnt(0)")
        for k in range(n):
            E(f"v_mov_b32 v2, s{40+2*k}\nv_not_b32 v3, v2\nglobal_atomic_umax v1, v3, s[4:5] offset:{8*k}\nglobal_atomic_umax v1, v2, s[4:5] offset:{8*k+4}\ns_nop 1")
        return
    E("s_load_dwordx2 s[4:5], s[0:1], 80\ns_mov_b64 exec, 1\nv_lshrrev_b32 v1, 6, v0\ns_lshl_b32 s18, s2, 3\nv_add_u32 v1, s18, v1\nv_lshlrev_b32 v1, 7, v1\ns_waitcnt lgkmcnt(0)")
    for k in (range(n) if OPT["stamps"] != 4 else (0, 7)):
        E(f"v_mov_b32 v2, s{40+2*k}\nv_mov_b32 v3, s{64+2*k}\nglobal_store_dwordx2 v1, v[2:3], s[4:5] offset:{8*k}\ns_nop 1")
    E("s_getreg_b32 s18, hwreg(HW_REG_HW_ID)\ns_getreg_b32 s19, hwreg(HW_REG_XCC_ID)\nv_mov_b32 v2, s18\nv_mov_b32 v3, s19\nglobal_store_dwordx2 v1, v[2:3], s[4:5] offset:120")

FLEX = ("v_add_f32", "v_exp_f32", "v_fmac_f32", "v_mul_f32", "v_permlane32_swap_b32")
def size(i):
    if i.kind == "none": return 0
    if i.kind in ("mfma", "ds", "vmem", "smem"): return 8
    if i.kind == "valu" and (i.mn.endswith("_e64") or i.mn.startswith(("v_pk_", "v_cvt_pk", "v_lshl_add", "v_add3", "v_sad", "v_xad"))): return 8
    assert i.mn in FLEX or i.mn in ("s_waitcnt", "s_nop", "s_setprio", "s_cbranch_scc1"), i.text
    return 4
def align8(block):
    out, run = [], []
    def flush():
        if len(run) % 2:
            fl = [k for k, x in enumerate(run) if x.mn in FLEX]
            if fl:
                k = fl[-1] if fl[-1] % 2 == 0 else None
                k = next((j for j in reversed(fl) if j % 2 == 0), None)
                if k is not None: run[k] = I(run[k].text.replace(run[k].mn, run[k].mn + "_e64", 1))
                else: run.append(I("s_nop 0"))
            else: run.append(I("s_nop 0"))
        out.extend(run); run.clear()
    for i in block:
        if size(i) == 4: run.append(i)
        else: flush(); out.append(i)
    flush()
    return out

def program(fast):
    E = Emitter(); sfx = "" if fast else "_x"
    prio = fast and OPT["prio"]
    first = range(4) if OPT["clate"] else range(7)
    if fast:
        E("s_cmp_ge_u32 s2, 256\ns_cbranch_scc1 L_end")
        stamp(E, 0)
        if prio: E("s_setprio 2")
        head(E, True)
        E(f"s_mov_b32 s{S_FLAG}, {OPT['force_slow']}\ns_mov_b32 s{S_JOB}, 0")
        E(f"s_cmp_ge_u32 s{S_W}, 256\ns_cbranch_scc1 L_y1")
        b0 = pad(E.take())
        E("s_waitcnt lgkmcnt(0)"); probe(E, 10); idx_loads(E, 0)
        o1 = pad(E.take(), [b0]); vq_idx = list(E.vq)
        E.vq = []
        E("L_y1:")
        if OPT["cpf"]:
            a = TM + 28
            E(f"""s_getpc_b64 s[18:19]
            L_pc:
            s_sub_u32 s18, s18, L_pc-{NAME}_kernel
            s_subb_u32 s19, s19, 0""")
            if OPT["cpf"] == 1:
                E(f"""v_bfe_u32 v{a}, v0, 6, 2
                v_and_b32 v{a+1}, 63, v0
                v_min_u32 v{a+1}, 23, v{a+1}
                v_mad_u32_u24 v{a}, v{a}, 24, v{a+1}""")
            else:
                E(f"""s_lshr_b32 s39, s2, 1
                v_bfe_u32 v{a}, v0, 6, 2
                s_and_b32 s39, s39, 0x7c
                v_add_u32 v{a}, s39, v{a}
                v_min_u32 v{a}, 103, v{a}""")
            E(f"""v_lshlrev_b32 v{a}, 7, v{a}
            v_mov_b32 v{a+1}, 0
            v_lshl_add_u64 v[{a}:{a+1}], v[{a}:{a+1}], 0, s[18:19]
            global_load_dword v{a+2}, v[{a}:{a+1}], off""")
        E(f"s_cmp_gt_u32 s{S_W}, 320\ns_cbranch_scc1 L_c1")
        y1a = E.take()
        load_hu(E)
        E(f"s_cmp_eq_u32 s{S_W}, 320\ns_cbranch_scc1 L_y1l")
        y1b = pad(E.take(), [b0 + y1a]); vq0 = list(E.vq)
        addr_w32(E); loads_w32(E); E("s_branch L_c1")
        y1w = pad(E.take(), [y1b]); vq_w = list(E.vq)
        E.vq = vq0
        E("L_y1l:"); loads_hp(E); loads_w16(E)
        y1l = pad(E.take(), [y1b]); vq_l = list(E.vq)
        E("L_c1:"); lane_consts(E, U_, Y4, True)
        E(f"v_and_b32 v{T2}, 63, v0\nv_lshlrev_b32 v{T2}, 4, v{T2}\nv_add_u32 v{T2}, {PAR}, v{T2}")
        E(f"s_cmp_ge_u32 s{S_W}, 256\ns_cbranch_scc1 L_y2")
        c1 = pad(E.take(), [o1, y1w, y1l])
        E("L_y2:")
        if OPT["clate"] == 2: E("s_barrier")
        E(f"s_cmp_gt_u32 s{S_W}, 320\ns_cbranch_scc1 L_y3")
        y2a = E.take()
        E(f"s_cmp_eq_u32 s{S_W}, 320\ns_cbranch_scc1 L_y2l")
        y2b = E.take()
        E.vq = vq_w; params_w(E); probe(E, 15); E("s_branch L_y3")
        y2w = pad(E.take(), [c1 + y2a + y2b])
        E.vq = vq_l; E.lq = []; E("L_y2l:"); params_l(E)
        y2l = pad(E.take(), [c1 + y2a + y2b])
        E("L_y3:\ns_waitcnt lgkmcnt(0)\ns_barrier"); idx_loads(E, 0); E("s_branch L_g")
        y3 = pad(E.take(), [y2w, y2l, c1])
        E.vq = vq_idx
        E("L_g:"); probe(E, 11); E.wait(f"v{I0}"); stamp(E, 1); gathers0(E, first)
        if OPT["clate"] == 2:
            E(f"s_cmp_ge_u32 s{S_W}, 256\ns_cbranch_scc1 L_g2\ns_barrier\nL_g2:")
            gathers0(E, (4, 5, 6))
        if OPT["clate"] != 1: idx_loads(E, 1)
        E(f"s_cmp_ge_u32 s{S_W}, 256\ns_cbranch_scc1 L_p")
        g = pad(E.take(), [c1, y3])
        bar = [I("s_barrier")]
        E("L_p:")
        for k, b in enumerate(PARQ): E(f"ds_read_b128 {r(b,4)}, v{T2} offset:{1024*k}")
        stamp(E, 2)
        conv(E, 0, True)
        if prio: E("s_setprio 1")
        stamp(E, 3)
        p = pad(E.take(), [g])
        layout_pre = b0 + o1 + [I('s_branch L_c1')] + y1a + y1b + y1w + y1l + c1 + g + bar + p
        layout_post = y2a + y2b + y2w + y2l + y3
        pres = [b0 + o1 + c1 + g + bar + p, b0 + y1a + y1b + y1w + c1 + y2a + y2b + y2w + y3 + g + p,
                b0 + y1a + y1b + y1l + c1 + y2a + y2b + y2l + y3 + g + p, b0 + y1a + c1 + y2a + y3 + g + p]
    else:
        E("L_slow:\ns_setprio 0")
        head(E, False); idx_loads(E, 0); idx_loads(E, 1); addr_w32(E); loads_w32(E); loads_hp(E)
        lane_consts(E, U_, Y4, False)
        gathers0(E, range(7)); params_exact(E)
        E(f"s_mov_b32 s{S_JOB}, 0")
        conv(E, 0, False)
        layout_pre = pad(E.take()); layout_post = []; pres = [layout_pre]
    segs = main(E, fast)
    tail = [I(f"s_cbranch_scc1 L_final{sfx}")]
    if fast: stamp(E, 4)
    if prio: E("s_setprio 2")
    E(f"s_mov_b32 s{S_JOB}, 1\nv_mov_b32 v{ZS}, v{SUM}\nv_mov_b32 v{AS}, v{ACC}")
    if not fast: gathers1(E)
    conv(E, 1, fast)
    if prio: E("s_setprio 0")
    if fast: stamp(E, 5)
    E(f"s_branch L_main{sfx}")
    mid = E.take()
    E.vq, E.lq = [], []
    E(f"L_final{sfx}:")
    if fast: stamp(E, 6)
    final(E, fast)
    if fast and OPT["stamps"]:
        stamp(E, 7); dump_stamps(E, 8)
    if fast: E("L_end:")
    E("s_endpgm")
    fin = E.take()
    al = align8 if fast and OPT["align"] else (lambda x: x)
    segs[0] = al(pad(segs[0], [layout_pre, pad(mid)]))
    if fast:
        segs[1] = al(pad(segs[1], [segs[0]]))
        segs[2] = al(pad(segs[2], [segs[0], segs[1]]))
        run0, run1 = segs[0] + segs[1] + segs[2] + tail, segs[0] + segs[2] + tail
    else:
        run0 = run1 = segs[0] + tail
    mid = pad(mid, [run0]); fin = pad(fin, [run0])
    for pre in pres: check_trace(pre + run0 + mid + run1 + fin)
    return layout_pre + [I(".p2align 3"), I(f"L_main{sfx}:")] + run0 + mid + fin + layout_post

HEAD = open("cdna_kernels/" + NAME + ".s.ref").read().split("; Override launch")[0]
out = HEAD + f"""; @launch grid=(256,1,1) block=(512,1,1) lds={PARZ+32}
; Generated by gen/gen.py.
.amdgcn_target "amdgcn-amd-amdhsa--gfx950"
.text
.globl {NAME}_kernel
.p2align 8
.type {NAME}_kernel,@function
{NAME}_kernel:
"""
fastp, slowp = program(True), program(False)
for i in fastp + slowp:
    out += (i.text if i.kind == "none" else "    " + i.text) + "\n"
out += f""".section .rodata,"a"
.p2align 6
.amdhsa_kernel {NAME}_kernel
  .amdhsa_next_free_vgpr 256
  .amdhsa_next_free_sgpr 96
  .amdhsa_accum_offset 256
  .amdhsa_group_segment_fixed_size 0
  .amdhsa_kernarg_size 88
  .amdhsa_user_sgpr_count 2
  .amdhsa_user_sgpr_kernarg_segment_ptr 1
  .amdhsa_system_sgpr_workgroup_id_x 1
  .amdhsa_float_denorm_mode_32 3
.end_amdhsa_kernel
"""
open(sys.argv[1], "w").write(out)
nn = sum(int(i.ops[0]) + 1 for i in fastp if i.mn == "s_nop")
print("fast instrs", len(fastp), "nop states", nn, "slow instrs", len(slowp))
```
